```python
import torch

def _softmax(x, axis=-1):
    return torch.softmax(x, dim=axis)

def _gelu(x):
    return torch.nn.functional.gelu(x, approximate='tanh')

def _silu(x):
    return torch.nn.functional.silu(x)

def _sigmoid(x):
    return torch.sigmoid(x)

def _layernorm(x, axis=-1, eps=1e-05):
    m = x.mean(dim=axis, keepdim=True)
    v = x.var(dim=axis, keepdim=True, unbiased=False)
    return (x - m) / torch.sqrt(v + eps)

def _scatter_add(tgt, idx, src, axis=0):
    return tgt.clone().index_add_(axis, idx, src)

def _segment_sum(src, seg, n):
    out = torch.zeros((n,) + src.shape[1:], dtype=src.dtype)
    return out.index_add_(0, seg, src)

def _pad(x, pw):
    flat = tuple((v for pair in reversed(pw) for v in pair))
    return torch.nn.functional.pad(x, flat)
kernel_name = 'gather_scatter__tensor_product_equiv_equiformer__graph'

def setup_inputs():

    _w = lambda a: (lambda t: t.to(torch.bfloat16) if t.is_floating_point() else t)(torch.as_tensor(a))
    N, deg, C, De = (12500, 64, 64, max(16, 1))
    E = N * deg
    src = (lambda lo, hi, *s: torch.randint(lo, hi, s))(0, N, E).to(torch.int64)
    dst = (lambda lo, hi, *s: torch.randint(lo, hi, s))(0, N, E).to(torch.int64)
    rvec = (lambda *s: torch.randn(*s, dtype=torch.bfloat16) * 0.05)(E, 3).to(float)
    rn = (torch.linalg.norm(rvec, dim=-1, keepdim=True) + 1e-06).to(float)
    rhat = (rvec / rn).to(float)
    eps = torch.zeros((3, 3, 3), dtype=float)
    eps[0, 1, 2] = eps[1, 2, 0] = eps[2, 0, 1] = 1.0
    eps[0, 2, 1] = eps[2, 1, 0] = eps[1, 0, 2] = -1.0
    return {'x': _w((lambda *s: torch.randn(*s, dtype=torch.bfloat16) * 0.2)(N, 4 * C).to(float)), 'rhat': _w(rhat), 'e_attr': _w((lambda *s: torch.randn(*s, dtype=torch.bfloat16) * 0.2)(E, De).to(float)), 'src': _w(src), 'dst': _w(dst), 'w_rad': _w((lambda *s: torch.randn(*s, dtype=torch.bfloat16) * 0.2)(De, 5 * C).to(float)), 'w_si0': _w((lambda *s: torch.randn(*s, dtype=torch.bfloat16) * 0.2)(2 * C, C).to(float)), 'w_si1': _w((lambda *s: torch.randn(*s, dtype=torch.bfloat16) * 0.05)(3 * C, C).to(float)), 'cg_eps': _w(eps)}

def reference(x, rhat, e_attr, src, dst, w_rad, w_si0, w_si1, cg_eps):
    N = x.shape[0]
    C = w_si0.shape[1]
    E = rhat.shape[0]
    x0 = x[:, :C].clone()
    x1 = x[:, C:].reshape(N, 3, C)
    R = (e_attr @ w_rad).reshape(E, 5, C)
    f0 = x0[src]
    f1 = x1[src]
    Y1 = rhat
    p00_0 = f0 * R[:, 0, :]
    p11_0 = torch.einsum('ejc,ej->ec', f1, Y1) * R[:, 1, :]
    p01_1 = torch.einsum('ec,ej->ejc', f0, Y1) * R[:, 2, :][:, None, :]
    p10_1 = f1 * R[:, 3, :][:, None, :]
    p11_1 = torch.einsum('ijk,ekc,ej->eic', cg_eps, f1, Y1) * R[:, 4, :][:, None, :]
    m0 = torch.concatenate([p00_0, p11_0], axis=-1) @ w_si0
    m1 = torch.einsum('ejp,pc->ejc', torch.concatenate([p01_1, p10_1, p11_1], axis=-1), w_si1)
    agg0 = _segment_sum(m0, dst, N)
    agg1 = _segment_sum(m1.reshape(E, 3 * C), dst, N).reshape(N, 3, C)
    gate = _sigmoid(agg0)
    out1 = agg1 * gate[:, None, :]
    return torch.concatenate([agg0, out1.reshape(N, 3 * C)], axis=-1)
```

```python
import re

def regs(tok):
    tok = tok.strip()
    neg = tok.startswith('-')
    if neg: tok = tok[1:]
    m = re.fullmatch(r'([vs])(\d+)', tok)
    if m: return [(m.group(1), int(m.group(2)))]
    m = re.fullmatch(r'([vs])\[(\d+):(\d+)\]', tok)
    if m: return [(m.group(1), i) for i in range(int(m.group(2)), int(m.group(3)) + 1)]
    if tok == 'vcc': return [('s', 'vcc')]
    if tok == 'm0': return [('s', 'm0')]
    if tok == 'exec': return [('s', 'exec')]
    return []

def split_ops(s):
    out, depth, cur = [], 0, ''
    for ch in s:
        if ch == '[': depth += 1
        if ch == ']': depth -= 1
        if ch == ',' and depth == 0:
            out.append(cur.strip()); cur = ''
        else: cur += ch
    if cur.strip(): out.append(cur.strip())
    return out

TRANS = ('v_exp_f32', 'v_rcp_f32', 'v_log_f32', 'v_rsq_f32', 'v_sqrt_f32')

class I:
    def __init__(self, text):
        self.text = text
        t = text.split(';')[0].strip()
        p = t.split(None, 1)
        self.mn = p[0]
        rest = p[1] if len(p) > 1 else ''
        ops = split_ops(rest)
        if ops:
            last = ops[-1].split()
            self.mods = ' '.join(last[1:]); ops[-1] = last[0]
        else: self.mods = ''
        self.ops = ops
        mn = self.mn
        self.mfma = mn.startswith('v_mfma')
        self.valu = mn.startswith('v_') and not self.mfma
        self.ds = mn.startswith('ds_')
        self.vmem = mn.startswith('buffer_') or mn.startswith('global_')
        self.salu = mn.startswith('s_')
        self.dpp = mn.endswith('_dpp')
        self.lds_dma = self.vmem and ' lds' in (' ' + self.mods)
        self.w, self.r = [], []
        R = lambda k: regs(ops[k]) if k < len(ops) else []
        if self.mfma:
            self.w = R(0); self.a = R(1) + R(2); self.c = R(3); self.r = self.a + self.c
            self.passes = 8 if '32x32' in mn else 4
        elif self.valu:
            if mn.startswith('v_cmp'):
                self.w = R(0); self.r = R(1) + R(2)
            elif mn.startswith('v_permlane') and 'swap' in mn:
                self.w = R(0) + R(1); self.r = R(0) + R(1)
            else:
                self.w = R(0); self.r = sum((R(k) for k in range(1, len(ops))), [])
                if mn.startswith(('v_fmac', 'v_writelane')) or self.dpp: self.r += R(0)
                if mn.startswith(('v_add_co', 'v_sub_co', 'v_addc_co')): self.w += R(1)
        elif self.ds:
            if 'read' in mn or '_rtn' in mn or 'permute' in mn or 'swizzle' in mn:
                self.w = R(0); self.r = sum((R(k) for k in range(1, len(ops))), [])
            else: self.r = sum((R(k) for k in range(len(ops))), [])
        elif self.vmem:
            if 'load' in mn and not self.lds_dma:
                self.w = R(0); self.r = sum((R(k) for k in range(1, len(ops))), [])
            else: self.r = sum((R(k) for k in range(len(ops))), [])
            self.wide_store = 'store' in mn and ('x3' in mn or 'x4' in mn)
        elif self.salu:
            if mn.startswith(('s_cmp', 's_cbranch', 's_branch', 's_waitcnt', 's_nop', 's_barrier', 's_endpgm', 's_setprio', 's_sleep')):
                self.r = sum((R(k) for k in range(len(ops))), [])
            else:
                self.w = R(0); self.r = sum((R(k) for k in range(1, len(ops))), [])
        self.states = 1
        if mn == 's_nop': self.states = int(ops[0]) + 1

def need(p, c):
    pw, cr, cw = set(p.w), set(c.r), set(c.w)
    n = 0
    pv = {x for x in pw if x[0] == 'v'}; ps = {x for x in pw if x[0] == 's'}
    if p.valu:
        if c.mfma and pv & cr: n = max(n, 2)
        if c.valu and c.dpp and pv & set(regs(c.ops[1])): n = max(n, 2)
        if c.valu and c.mn.startswith('v_permlane') and pv & cr: n = max(n, 2)
        if c.valu and c.mn.startswith(('v_readlane', 'v_readfirstlane')) and pv & cr: n = max(n, 1)
        if ps & cr:
            if c.vmem: n = max(n, 5)
            elif c.valu and c.mn.startswith(('v_readlane', 'v_writelane')): n = max(n, 4)
            elif c.valu: n = max(n, 2)
        if p.mn.startswith('v_cmp') and c.mn.startswith('v_cndmask') and ('s', 'vcc') in pw and len(c.ops) == 4 and c.ops[3] == 'vcc': n = max(n, 2)
        if p.mn.startswith(TRANS) and c.valu and not c.mn.startswith(TRANS) and pv & cr: n = max(n, 1)
        if 'dst_sel' in p.mods and 'dst_sel:DWORD' not in p.mods and c.valu and pv & (cr | cw): n = max(n, 1)
    if p.mfma:
        big = {8: 12, 4: 8}[p.passes]; part = {8: 10, 4: 6}[p.passes]; war = {8: 7, 4: 3}[p.passes]
        if c.mfma:
            if pv & set(c.a): n = max(n, big)
            if pv & set(c.c) and (p.w != c.c or p.passes != c.passes): n = max(n, part)
            if pv & cw and not (pv & set(c.c)): n = max(n, big)
        elif (c.valu or c.ds or c.vmem) and pv & (cr | cw): n = max(n, big)
        if c.valu and set(p.c) & cw: n = max(n, war)
    if p.salu and ('s', 'm0') in pw and c.lds_dma: n = max(n, 1)
    if p.vmem and getattr(p, 'wide_store', False):
        data = set(regs(p.ops[0]))
        if data & cw: n = max(n, 2 if c.valu else 1)
    return n

def check(lines, name=''):
    ins = []
    for l in lines:
        t = l.split(';')[0].strip()
        if not t or t.endswith(':') or t.startswith('.'): continue
        ins.append(I(t))
    bad = 0
    for j, c in enumerate(ins):
        dist = 0
        for i in range(j - 1, max(-1, j - 24), -1):
            p = ins[i]
            nd = need(p, c)
            if nd > dist:
                print(f'HAZARD[{name}] need {nd} have {dist}:\n    {p.text}\n    {c.text}'); bad += 1
            dist += p.states
            if dist >= 20: break
    return bad
```

```python
import sys
from hazard import check

N, E = 12500, 800000
NPB = 49
NCH, CH = 250, 3200
CAP = 112
SLOT = 1424
WS_PART = 0
WS_ENT = 16777216
WS_WT = WS_ENT + NCH * CH * 12
WS_FRAG = WS_WT + 20480
WS_TAB = WS_FRAG + 40960
WS_END = WS_TAB + NCH * 1024
DPPM = 'row_mask:0xf bank_mask:0xf'


class Asm:
    def __init__(self): self.l = []
    def __call__(self, s):
        for x in s.strip('\n').split('\n'):
            self.l.append(x.strip() if x.strip().endswith(':') else '    ' + x.strip())
    def ext(self, lines): self.l += lines


def srd(A, d, lo, hi, size):
    A(f's_mov_b32 s{d}, s{lo}\ns_and_b32 s{d+1}, s{hi}, 0xffff\ns_mov_b32 s{d+2}, {size}\ns_mov_b32 s{d+3}, 0x20000')


def desc(name, vgpr, sgpr):
    return f'''.section .rodata,"a"
.p2align 6
.amdhsa_kernel {name}
  .amdhsa_next_free_vgpr {vgpr}
  .amdhsa_next_free_sgpr {sgpr}
  .amdhsa_accum_offset {(vgpr + 3) // 4 * 4}
  .amdhsa_group_segment_fixed_size 0
  .amdhsa_kernarg_size 96
  .amdhsa_user_sgpr_count 2
  .amdhsa_user_sgpr_kernarg_segment_ptr 1
  .amdhsa_system_sgpr_workgroup_id_x 1
.end_amdhsa_kernel
'''


K1_CNT, K1_OFF, K1_LDS = 38400, 39424, 40448


def gen_k1():
    A = Asm()
    A('''
    sort_edges_kernel:
    s_cmp_ge_u32 s2, 256
    s_cbranch_scc1 K1_END
    s_load_dwordx2 s[4:5], s[0:1], 8
    s_load_dwordx4 s[8:11], s[0:1], 24
    s_load_dwordx4 s[32:35], s[0:1], 40
    s_load_dwordx2 s[36:37], s[0:1], 56
    s_load_dwordx2 s[6:7], s[0:1], 88
    v_lshlrev_b32 v1, 4, v0
    v_mul_u32_u24 v2, 24, v0
    v_lshrrev_b32 v3, 6, v0
    v_and_b32 v40, 63, v0
    v_readfirstlane_b32 s38, v3
    s_waitcnt lgkmcnt(0)
    ''')
    srd(A, 12, 4, 5, E * 6)
    srd(A, 16, 8, 9, E * 4)
    srd(A, 20, 10, 11, E * 4)
    srd(A, 24, 6, 7, WS_END)
    A(f'''
    s_cmp_ge_u32 s2, {NCH}
    s_cbranch_scc1 K1_PREP
    s_mul_i32 s28, s2, {CH * 4}
    s_mul_i32 s29, s2, {CH * 6}
    v_cmp_gt_u32 vcc, {CH // 4}, v0
    s_mov_b64 s[30:31], vcc
    s_mov_b64 exec, vcc
    buffer_load_dwordx4 v[4:7], v1, s[20:23], s28 offen
    buffer_load_dwordx4 v[8:11], v1, s[16:19], s28 offen
    buffer_load_dwordx4 v[12:15], v2, s[12:15], s29 offen
    buffer_load_dwordx2 v[16:17], v2, s[12:15], s29 offen offset:16
    s_mov_b64 exec, -1
    v_cmp_gt_u32 vcc, 0x100, v0
    v_lshlrev_b32 v18, 2, v0
    v_mov_b32 v19, 0
    s_mov_b64 exec, vcc
    ds_write_b32 v18, v19 offset:{K1_CNT}
    s_mov_b64 exec, -1
    s_mul_i32 s39, s2, {CH * 32}
    v_lshl_add_u32 v32, v0, 7, s39
    v_mov_b32 v41, 1
    s_waitcnt lgkmcnt(0)
    s_barrier
    s_mov_b64 exec, s[30:31]
    s_waitcnt vmcnt(3)
    ''')
    for i in range(4): A(f'v_mul_u32_u24 v{20+i}, 21400, v{4+i}')
    for i in range(4): A(f'v_lshrrev_b32 v{20+i}, 20, v{20+i}')
    for i in range(4): A(f'v_mul_u32_u24 v{28+i}, {NPB}, v{20+i}')
    for i in range(4): A(f'v_lshlrev_b32 v{20+i}, 2, v{20+i}')
    for i in range(4): A(f'ds_add_rtn_u32 v{24+i}, v{20+i}, v41 offset:{K1_CNT}')
    for i in range(4): A(f'v_sub_u32 v{28+i}, v{4+i}, v{28+i}')
    for i in range(1, 4): A(f'v_add_u32 v{32+i}, {32*i}, v32')
    for i in range(4): A(f'v_lshl_or_b32 v{28+i}, v{28+i}, 26, v{32+i}')
    A('''
    s_mov_b32 s40, 0x05040100
    s_mov_b32 s41, 0x05040302
    s_waitcnt vmcnt(0)
    v_alignbit_b32 v33, v14, v13, 16
    v_alignbit_b32 v35, v17, v16, 16
    v_perm_b32 v36, v8, v13, s40
    v_perm_b32 v37, v9, v14, s41
    v_perm_b32 v38, v10, v16, s40
    v_perm_b32 v39, v11, v17, s41
    v_mov_b32 v32, v12
    v_mov_b32 v34, v15
    v_xor_b32 v36, 0x8000, v36
    v_xor_b32 v37, 0x8000, v37
    v_xor_b32 v38, 0x8000, v38
    v_xor_b32 v39, 0x8000, v39
    s_mov_b64 exec, -1
    v_lshlrev_b32 v42, 4, v40
    s_waitcnt lgkmcnt(0)
    s_barrier
    ''')
    A(f'''
    ds_read_b128 v[4:7], v42 offset:{K1_CNT}
    s_waitcnt lgkmcnt(0)
    v_add_u32 v8, v4, v5
    v_add_u32 v9, v8, v6
    v_add_u32 v10, v9, v7
    v_mov_b32 v11, v10
    s_nop 1
    ''')
    for sh in ('row_shr:1', 'row_shr:2', 'row_shr:4', 'row_shr:8'):
        A(f'v_add_u32_dpp v11, v11, v11 {sh} {DPPM}\ns_nop 1')
    A('v_add_u32_dpp v11, v11, v11 row_bcast:15 row_mask:0xa bank_mask:0xf\ns_nop 1')
    A('v_add_u32_dpp v11, v11, v11 row_bcast:31 row_mask:0xc bank_mask:0xf')
    A(f'''
    v_sub_u32 v12, v11, v10
    v_add_u32 v13, v12, v4
    v_add_u32 v14, v12, v8
    v_add_u32 v15, v12, v9
    ds_write_b128 v42, v[12:15] offset:{K1_OFF}
    s_cmp_lg_u32 s38, 0
    s_cbranch_scc1 K1_NOTAB
    v_lshl_or_b32 v44, v4, 16, v12
    v_lshl_or_b32 v45, v5, 16, v13
    v_lshl_or_b32 v46, v6, 16, v14
    v_lshl_or_b32 v47, v7, 16, v15
    s_lshl_b32 s42, s2, 10
    s_add_u32 s42, s42, {WS_TAB}
    buffer_store_dwordx4 v[44:47], v42, s[24:27], s42 offen
    K1_NOTAB:
    s_mov_b64 exec, s[30:31]
    ''')
    for i in range(4): A(f'ds_read_b32 v{4+i}, v{20+i} offset:{K1_OFF}')
    for i in range(4):
        A(f's_waitcnt lgkmcnt({3-i})\nv_add_u32 v{4+i}, v{4+i}, v{24+i}\nv_mul_u32_u24 v{4+i}, 12, v{4+i}')
    for i in range(4):
        A(f'ds_write2_b32 v{4+i}, v{32+i}, v{36+i} offset0:0 offset1:1\nds_write_b32 v{4+i}, v{28+i} offset:8')
    A(f'''
    s_mul_i32 s42, s2, {CH * 12}
    s_add_u32 s42, s42, {WS_ENT}
    s_add_u32 s43, s42, 12800
    s_add_u32 s44, s42, 25600
    s_waitcnt lgkmcnt(0)
    s_barrier
    ds_read_b128 v[4:7], v1
    ds_read_b128 v[8:11], v1 offset:12800
    ds_read_b128 v[12:15], v1 offset:25600
    s_waitcnt lgkmcnt(2)
    buffer_store_dwordx4 v[4:7], v1, s[24:27], s42 offen
    s_waitcnt lgkmcnt(1)
    buffer_store_dwordx4 v[8:11], v1, s[24:27], s43 offen
    s_waitcnt lgkmcnt(0)
    buffer_store_dwordx4 v[12:15], v1, s[24:27], s44 offen
    s_endpgm
    K1_PREP:
    s_cmp_lg_u32 s2, {NCH}
    s_cbranch_scc1 K1_FRAG
    ''')
    srd(A, 12, 32, 33, 16 * 320 * 2)
    A('s_cmp_ge_u32 s38, 10\ns_cbranch_scc1 K1_END')
    for ps in range(2):
        A(f'''
        s_add_u32 s39, s38, {10 * ps}
        s_and_b32 s40, s39, 1
        s_lshr_b32 s41, s39, 1
        s_mul_i32 s40, s40, {8 * 640}
        s_lshl_b32 s41, s41, 6
        s_add_u32 s40, s40, s41
        v_lshrrev_b32 v4, 5, v40
        v_mul_u32_u24 v4, {4 * 640}, v4
        v_and_b32 v5, 31, v40
        v_lshl_add_u32 v4, v5, 1, v4
        v_mov_b32 v8, 0
        v_mov_b32 v9, 0
        v_mov_b32 v10, 0
        v_mov_b32 v11, 0
        ''')
        for r in range(4): A(f'buffer_load_short_d16_hi v{8+r}, v4, s[12:15], s40 offen offset:{640*r}')
        A(f'''
        s_lshl_b32 s41, s39, 10
        s_add_u32 s41, s41, {WS_WT}
        v_lshlrev_b32 v6, 4, v40
        s_waitcnt vmcnt(0)
        buffer_store_dwordx4 v[8:11], v6, s[24:27], s41 offen
        s_waitcnt vmcnt(0)
        ''')
    A('s_endpgm\nK1_FRAG:')
    srd(A, 12, 34, 35, 128 * 64 * 2)
    srd(A, 16, 36, 37, 192 * 64 * 2)
    A(f'''
    s_cmp_ge_u32 s38, 8
    s_cbranch_scc1 K1_END
    s_sub_u32 s39, s2, {NCH + 1}
    s_lshl_b32 s39, s39, 3
    s_add_u32 s39, s39, s38
    s_cmp_ge_u32 s39, 20
    s_cselect_b32 s40, 20, 0
    s_cselect_b32 s41, 64, 0
    s_sub_u32 s40, s39, s40
    v_bfe_u32 v4, v40, 2, 1
    v_bfe_u32 v5, v40, 3, 2
    v_and_b32 v6, 3, v40
    v_lshlrev_b32 v4, 4, v4
    v_lshl_add_u32 v4, v5, 2, v4
    v_add_u32 v4, v4, v6
    v_lshl_add_u32 v4, v4, 1, s41
    v_lshrrev_b32 v5, 5, v40
    s_lshl_b32 s45, s39, 10
    s_add_u32 s45, s45, {WS_FRAG}
    v_lshlrev_b32 v7, 4, v40
    s_cmp_ge_u32 s40, 16
    s_cbranch_scc1 K1_FRAGC
    v_lshl_add_u32 v4, v5, 9, v4
    s_and_b32 s43, s40, 7
    s_lshl_b32 s43, s43, 10
    s_add_u32 s44, s43, 8192
    s_cmp_ge_u32 s40, 8
    s_cbranch_scc1 K1_FRAGB
    ''')
    for n in range(4):
        A(f'buffer_load_ushort v{8+n}, v4, s[12:15], s43 offen offset:{128*n}')
        A(f'buffer_load_ushort v{12+n}, v4, s[12:15], s44 offen offset:{128*n}')
    A('s_branch K1_FRAGST\nK1_FRAGB:')
    for n in range(4):
        A(f'buffer_load_ushort v{8+n}, v4, s[16:19], s43 offen offset:{128*n}')
        A(f'buffer_load_ushort v{12+n}, v4, s[16:19], s44 offen offset:{128*n}')
    A('''
    s_branch K1_FRAGST
    K1_FRAGC:
    v_lshl_add_u32 v4, v5, 10, v4
    s_sub_u32 s43, s40, 16
    s_lshl_b32 s43, s43, 11
    s_add_u32 s43, s43, 16384
    ''')
    for n in range(4):
        A(f'buffer_load_ushort v{8+n}, v4, s[16:19], s43 offen offset:{256*n}')
        A(f'buffer_load_ushort v{12+n}, v4, s[16:19], s43 offen offset:{256*n+128}')
    A('''
    K1_FRAGST:
    s_waitcnt vmcnt(0)
    v_lshl_or_b32 v8, v12, 16, v8
    v_lshl_or_b32 v9, v13, 16, v9
    v_lshl_or_b32 v10, v14, 16, v10
    v_lshl_or_b32 v11, v15, 16, v11
    buffer_store_dwordx4 v[8:11], v7, s[24:27], s45 offen
    K1_END:
    s_endpgm
    ''')
    return A.l


class K2:
    def __init__(self, NW=8, eflag='nt', xflag='', dump=0):
        self.dump = dump; self.NW = NW; self.eflag = eflag; self.xflag = xflag
        self.XROW = 1088
        self.XW = 7 * self.XROW + 1024
        self.L_CNT = 0
        self.L_TK = NPB * 4
        self.L_PAD = self.L_TK + 4 - 64
        self.L_SL = 336
        self.L_WT = self.L_SL + NPB * SLOT - 16
        self.L_X = self.L_WT + 20480
        self.L_A = self.L_X + NW * self.XW
        self.LDS = self.L_A + ((NW + 1) // 2) * 1024
        assert self.LDS <= 163840, self.LDS
        self.NP = -(-NCH // (4 * NW))

    blk = dict(S0=0, Vz=8, Vx=16, Vy=24, Ux=32, Cy=40, Cx=48, Uy=56, Uz=64, D=72, Cz=80)
    B0 = 176
    OA, OB, OC = 208, 212, 216
    AU = 220
    T0 = 228
    MA, MB, MC, ME = 232, 233, 234, 235
    E0 = 236
    V_TRB, V_TRA, V_EL, V_XL, V_EAP, V_ODM, V_WA, V_CNT, V_TK, V_EA, V_LANE, V_SRC = range(239, 251)
    S_X, S_EA, S_WS, S_OUT = 8, 12, 16, 20
    S_W, S_B, S_NN = 3, 24, 25
    S_C0, S_NC, S_P0, S_SUB, S_FIRST, S_LAST, S_NC0, S_NP0, S_NSUB = range(26, 35)
    S_CUR, S_STEPS, S_ECUR, S_EPTR, S_NSLOT, S_NSTEPS, S_TK, S_XB, S_AB = range(35, 44)
    S_T0, S_T1, S_T2, S_T3 = 44, 45, 46, 47
    S_BOT, S_AMASK = 48, 50
    S_EMASK = 52
    S_M = 54

    def acc(self, name, t): return t * 88 + self.blk[name]
    def Breg(self, m, t): return self.B0 + (m * 2 + t) * 4

    def setup_next(self, A, tag):
        t0, t1, t2 = self.T0, self.T0 + 1, self.T0 + 2
        z = self.B0
        A(f'''
        s_mov_b32 s{self.S_NSLOT}, {self.L_PAD}
        s_mov_b32 s{self.S_NSTEPS}, 0
        v_mov_b32 v{z}, 0
        v_mov_b32 v{z+1}, 0xffff0000
        s_cmp_lt_u32 s{self.S_TK}, s{self.S_NN}
        s_cbranch_scc0 SN_{tag}
        v_readlane_b32 s{self.S_T0}, v{self.V_CNT}, s{self.S_TK}
        s_mul_i32 s{self.S_NSLOT}, s{self.S_TK}, {SLOT}
        v_mov_b32 v{z+2}, 0x03ffffe0
        s_add_u32 s{self.S_NSLOT}, s{self.S_NSLOT}, {self.L_SL}
        s_add_u32 s{self.S_T1}, s{self.S_T0}, 15
        s_lshr_b32 s{self.S_T1}, s{self.S_T1}, 4
        s_max_u32 s{self.S_NSTEPS}, s{self.S_T1}, 1
        s_lshl_b32 s{self.S_T1}, s{self.S_NSTEPS}, 4
        v_add_u32 v{t0}, s{self.S_T0}, v{self.V_LANE}
        v_cmp_gt_u32 vcc, s{self.S_T1}, v{t0}
        v_lshrrev_b32 v{t1}, 4, v{t0}
        v_lshl_add_u32 v{t2}, v{t0}, 2, s{self.S_NSLOT}
        v_lshl_add_u32 v{t2}, v{t1}, 7, v{t2}
        s_mov_b64 exec, vcc
        ds_write2_b32 v{t2}, v{z}, v{z+1} offset0:0 offset1:16
        ds_write_b32 v{t2}, v{z+2} offset:128
        s_mov_b64 exec, -1
        SN_{tag}:
        ''')

    def dma_items(self):
        t = self.T0
        it = []
        it.append([f'v_lshlrev_b32_sdwa v{self.V_SRC}, 9, v{self.E0+1} dst_sel:DWORD dst_unused:UNUSED_PAD src0_sel:DWORD src1_sel:WORD_1',
                   f'v_and_or_b32 v{self.V_EA}, v{self.E0+2}, s{self.S_EMASK}, v{self.V_EAP}',
                   f's_mov_b32 m0, s{self.S_AB}',
                   f's_mov_b64 exec, s[{self.S_AMASK}:{self.S_AMASK+1}]',
                   f'buffer_load_dwordx4 v{self.V_EA}, s[{self.S_EA}:{self.S_EA+3}], 0 offen {self.eflag} lds',
                   's_mov_b64 exec, -1'])
        for j in range(8):
            it.append([f's_add_u32 m0, s{self.S_XB}, {j*self.XROW}',
                       f'v_add_u32_dpp v{self.V_EA}, v{self.V_SRC}, v{self.V_XL} row_newbcast:{j} {DPPM}',
                       f'buffer_load_dwordx4 v{self.V_EA}, s[{self.S_X}:{self.S_X+3}], 0 offen {self.xflag} lds'])
        return it

    def build_op(self, dst, m):
        t = self.T0
        o = []
        for n in range(4):
            a, b = t + (2 * n) % 4, t + (2 * n) % 4 + 1
            o.append(f'v_mul_f32_dpp v{a}, v{m}, v{self.AU+2*n} row_newbcast:{2*n} {DPPM}')
            o.append(f'v_mul_f32_dpp v{b}, v{m}, v{self.AU+2*n+1} row_newbcast:{2*n+1} {DPPM}')
            o.append(f'v_cvt_pk_bf16_f32 v{dst+n}, v{a}, v{b}')
        return o

    def step(self, first):
        A = Asm()
        t = self.T0; e = self.E0
        bot = f's[{self.S_BOT}:{self.S_BOT+1}]'
        A(f'''
        v_lshlrev_b32 v{t}, 16, v{e}
        v_and_b32 v{t+1}, 0xffff0000, v{e}
        v_lshlrev_b32 v{t+2}, 16, v{e+1}
        s_add_u32 s{self.S_ECUR}, s{self.S_ECUR}, 192
        s_cmp_eq_u32 s{self.S_STEPS}, 1
        s_cselect_b32 s{self.S_EPTR}, s{self.S_NSLOT}, s{self.S_ECUR}
        v_cndmask_b32_e64 v{self.MA}, 1.0, v{t+2}, {bot}
        v_cndmask_b32_e64 v{self.MB}, v{t}, v{t+1}, {bot}
        v_cndmask_b32_e64 v{self.MC}, v{t+2}, 1.0, {bot}
        v_cndmask_b32_e64 v{self.ME}, v{t+1}, -v{t}, {bot}
        v_add_u32 v{self.V_EA}, s{self.S_EPTR}, v{self.V_EL}
        s_waitcnt vmcnt(0)
        ds_read_b64_tr_b16 v[{self.OC}:{self.OC+1}], v{self.V_TRA}
        ds_read_b64_tr_b16 v[{self.OC+2}:{self.OC+3}], v{self.V_TRA} offset:64
        ds_read2_b32 v[{e}:{e+1}], v{self.V_EA} offset0:0 offset1:16
        ds_read_b32 v{e+2}, v{self.V_EA} offset:128
        ''')
        rd = []
        for m in range(4):
            for tt in range(2):
                for q in range(2):
                    b = self.Breg(m, tt) + 2 * q
                    rd.append(f'ds_read_b64_tr_b16 v[{b}:{b+1}], v{self.V_TRB} offset:{q*4*self.XROW + m*128 + tt*64}')
        for r in rd[:8]: A(r)
        A('s_waitcnt lgkmcnt(10)')
        up = []
        for n in range(4):
            up.append(f'v_lshlrev_b32 v{self.AU+2*n}, 16, v{self.OC+n}')
            up.append(f'v_and_b32 v{self.AU+2*n+1}, 0xffff0000, v{self.OC+n}')
        for k in range(8): A(up[k]); A(rd[8 + k])
        for x in self.build_op(self.OA, self.MA): A(x)
        A('s_waitcnt lgkmcnt(0)')

        def mf(win, tt, op, m, zero):
            d = self.acc(win, tt); b = self.Breg(m, tt)
            c = '0' if (first and zero) else f'v[{d}:{d+15}]'
            return f'v_mfma_f32_32x32x16_bf16 v[{d}:{d+15}], v[{op}:{op+3}], v[{b}:{b+3}], {c}'
        seq = [('S0', self.OA, 0, 1), ('Ux', self.OA, 1, 1), ('Vx', self.OB, 0, 1), ('D', self.OB, 1, 1),
               ('Cx', self.OC, 2, 1), ('Uz', self.OA, 3, 0), ('Cy', self.OB, 3, 0), ('D', self.OC, 2, 0)]
        M = [mf(w, tt, op, m, z) for (w, op, m, z) in seq for tt in range(2)]
        dma = self.dma_items()
        ob = self.build_op(self.OB, self.MB)
        oc = self.build_op(self.OC, self.MC)
        oe = self.build_op(self.OC, self.ME)
        od = [f'v_xor_b32 v{self.OA+n}, v{self.V_ODM}, v{self.OA+n}' for n in range(4)]
        fill = [[] for _ in range(16)]
        fill[0] = dma[0] + dma[1] + ob[0:3]
        fill[1] = dma[2] + ob[3:6] + dma[3]
        fill[2] = dma[4] + ob[6:9] + dma[5]
        fill[3] = ob[9:12] + dma[6] + dma[7] + dma[8]
        fill[4] = oc[0:3] + od[0:2]
        fill[5] = oc[3:6] + od[2:4]
        fill[6] = oc[6:9]
        fill[7] = oc[9:12] + ['s_nop 1']
        fill[8] = ['s_nop 1']
        fill[9] = oe[0:3]
        fill[10] = oe[3:6]
        fill[11] = oe[6:9]
        fill[12] = oe[9:12]
        fill[13] = ['s_nop 0']
        A('s_nop 0')
        for k in range(16):
            A(M[k])
            for x in fill[k]: A(x)
        A(f's_sub_u32 s{self.S_STEPS}, s{self.S_STEPS}, 1\ns_cmp_lg_u32 s{self.S_STEPS}, 0')
        return A.l

    def contract(self):
        A = Asm()
        groups = [(0, ['S0']), (2, ['Vx', 'Vy', 'Vz']), (3, ['Ux', 'Uy', 'Uz']), (4, ['Cx', 'Cy', 'Cz']), (1, ['D'])]
        bufs = [self.B0, self.B0 + 16]
        def rd(g):
            p = groups[g][0]; b = bufs[g % 2]
            o = []
            for tt in range(2):
                for q in range(2):
                    r = b + tt * 8 + q * 4
                    o.append(f'ds_read_b128 v[{r}:{r+3}], v{self.V_WA} offset:{((p*2+tt)*2+q)*1024}')
            return o
        for x in rd(0) + rd(1): A(x)
        for g, (p, names) in enumerate(groups):
            A(f's_waitcnt lgkmcnt({4 if g < 4 else 0})')
            b = bufs[g % 2]
            for rho in range(8):
                for tt in range(2):
                    for nm in names:
                        a = self.acc(nm, tt); w = b + tt * 8 + rho
                        A(f'v_mul_f32 v{a}, v{a}, v{w}' if rho == 0 else f'v_fmac_f32 v{a}, v{a+rho}, v{w}')
            if g + 2 < 5:
                for x in rd(g + 2): A(x)
        t = self.T0
        A(f'v_lshl_add_u32 v{t}, v{self.V_LANE}, 2, s{self.S_CUR}\nv_lshl_add_u32 v{t+1}, v{self.V_LANE}, 1, s{self.S_CUR}')
        order = ['S0', 'Vx', 'Vy', 'Vz', 'Ux', 'Uy', 'Uz', 'Cx', 'Cy', 'Cz', 'D']
        for nm in order: A(f'v_permlane32_swap_b32 v{self.acc(nm,0)}, v{self.acc(nm,1)}')
        for nm in order: A(f'v_add_f32 v{self.acc(nm,0)}, v{self.acc(nm,0)}, v{self.acc(nm,1)}')
        r = lambda nm: f'v{self.acc(nm,0)}'
        o = self.OA
        A(f'''
        v_cvt_pk_bf16_f32 v{o+1}, {r('Vx')}, {r('Ux')}
        v_cvt_pk_bf16_f32 v{o+2}, {r('Vy')}, {r('Uy')}
        v_cvt_pk_bf16_f32 v{o+3}, -{r('Vz')}, {r('Uz')}
        v_cvt_pk_bf16_f32 v{o+4}, {r('Cx')}, -{r('Cy')}
        v_cvt_pk_bf16_f32 v{o+5}, -{r('Cz')}, -{r('Cz')}
        v_cvt_pk_bf16_f32 v{o}, {r('S0')}, {r('D')}
        ds_write_b32 v{t}, v{o+1} offset:256
        ds_write_b32 v{t}, v{o+2} offset:512
        ds_write_b32 v{t}, v{o+3} offset:768
        ds_write_b16 v{t+1}, v{o+4} offset:1024
        ds_write_b16_d16_hi v{t+1}, v{o+4} offset:1152
        ds_write_b16 v{t+1}, v{o+5} offset:1280
        ds_write_b32 v{t}, v{o}
        ''')
        for x in self.zero_uz(): A(x)
        return A.l

    def zero_uz(self):
        return [f'v_mov_b32 v{self.acc("Uz",tt)+k}, 0' for tt in range(2) for k in range(8)]

    def node_start(self):
        A = Asm()
        A(f'''
        v_readfirstlane_b32 s{self.S_TK}, v{self.V_TK}
        s_mov_b32 s{self.S_CUR}, s{self.S_NSLOT}
        s_mov_b32 s{self.S_ECUR}, s{self.S_NSLOT}
        s_mov_b32 s{self.S_STEPS}, s{self.S_NSTEPS}
        ''')
        self.setup_next(A, 'B')
        z = self.B0
        A(f'''
        v_mov_b32 v{z+4}, {self.L_TK}
        v_mov_b32 v{z+5}, 1
        s_mov_b64 exec, 1
        ds_add_rtn_u32 v{self.V_TK}, v{z+4}, v{z+5}
        s_mov_b64 exec, -1
        ''')
        return A.l

    def prologue(self):
        A = Asm(); NW, NP = self.NW, self.NP
        L = self.V_LANE
        A(f'''
        aggregate_kernel:
        s_cmp_ge_u32 s2, 256
        s_cbranch_scc1 K2_END
        s_load_dwordx2 s[4:5], s[0:1], 0
        s_load_dwordx2 s[6:7], s[0:1], 16
        s_load_dwordx2 s[90:91], s[0:1], 72
        s_load_dwordx2 s[92:93], s[0:1], 88
        v_lshrrev_b32 v1, 6, v0
        v_and_b32 v{L}, 63, v0
        s_and_b32 s{self.S_B}, s2, 7
        v_readfirstlane_b32 s{self.S_W}, v1
        s_lshl_b32 s{self.S_B}, s{self.S_B}, 5
        s_lshr_b32 s{self.S_T0}, s2, 3
        s_add_u32 s{self.S_B}, s{self.S_B}, s{self.S_T0}
        s_mul_i32 s{self.S_T0}, s{self.S_B}, {NPB}
        s_sub_u32 s{self.S_T0}, {N}, s{self.S_T0}
        s_min_u32 s{self.S_NN}, s{self.S_T0}, {NPB}
        s_waitcnt lgkmcnt(0)
        ''')
        srd(A, self.S_X, 4, 5, N * 512)
        srd(A, self.S_EA, 6, 7, E * 32)
        srd(A, self.S_WS, 92, 93, WS_END)
        srd(A, self.S_OUT, 90, 91, N * 512)
        ws = f's[{self.S_WS}:{self.S_WS+3}]'
        A(f'v_lshlrev_b32 v2, 4, v{L}\ns_lshl_b32 s{self.S_T0}, s{self.S_W}, 10')
        for k in range(-(-20 // NW)):
            if (k + 1) * NW > 20:
                A(f's_cmp_ge_u32 s{self.S_W}, {20 - k*NW}\ns_cbranch_scc1 K2_WDONE')
            A(f'''
            s_add_u32 m0, s{self.S_T0}, {self.L_WT + k*NW*1024}
            s_add_u32 s{self.S_T1}, s{self.S_T0}, {WS_WT + k*NW*1024}
            buffer_load_dwordx4 v2, {ws}, s{self.S_T1} offen lds
            ''')
        A('K2_WDONE:')
        A(f'''
        s_mov_b32 s{self.S_BOT}, 0xffff0000
        s_mov_b32 s{self.S_BOT+1}, 0xffff0000
        s_and_b32 s{self.S_T0}, s{self.S_W}, 1
        s_lshl_b32 s{self.S_T1}, s{self.S_T0}, 3
        s_lshl_b32 s{self.S_AMASK}, 0x00ff00ff, s{self.S_T1}
        s_mov_b32 s{self.S_AMASK+1}, s{self.S_AMASK}
        s_mov_b32 s{self.S_EMASK}, 0x03ffffff
        s_mul_i32 s{self.S_XB}, s{self.S_W}, {self.XW}
        s_add_u32 s{self.S_XB}, s{self.S_XB}, {self.L_X}
        s_lshr_b32 s{self.S_AB}, s{self.S_W}, 1
        s_lshl_b32 s{self.S_AB}, s{self.S_AB}, 10
        s_add_u32 s{self.S_AB}, s{self.S_AB}, {self.L_A}
        s_lshl_b32 s{self.S_T0}, s{self.S_T0}, 7
        s_add_u32 s{self.S_T0}, s{self.S_T0}, s{self.S_AB}
        v_lshrrev_b32 v3, 5, v{L}
        v_bfe_u32 v4, v{L}, 4, 1
        v_bfe_u32 v5, v{L}, 2, 2
        v_and_b32 v6, 3, v{L}
        v_mul_u32_u24 v7, {self.XROW}, v5
        v_lshl_add_u32 v7, v3, 9, v7
        v_lshl_add_u32 v7, v4, 5, v7
        v_lshl_add_u32 v7, v6, 3, v7
        v_add_u32 v{self.V_TRB}, s{self.S_XB}, v7
        v_lshrrev_b32 v7, 1, v6
        v_lshl_add_u32 v7, v3, 1, v7
        v_lshlrev_b32 v7, 8, v7
        v_lshl_add_u32 v7, v5, 4, v7
        v_and_b32 v8, 1, v6
        v_lshl_add_u32 v7, v8, 3, v7
        v_add_u32 v{self.V_TRA}, s{self.S_T0}, v7
        v_and_b32 v7, 7, v{L}
        v_lshl_add_u32 v7, v3, 3, v7
        v_lshlrev_b32 v{self.V_EL}, 2, v7
        v_and_b32 v7, 31, v{L}
        v_lshlrev_b32 v{self.V_XL}, 4, v7
        v_lshlrev_b32 v{self.V_EAP}, 4, v4
        v_mul_u32_u24 v7, 0x8000, v4
        v_lshl_or_b32 v{self.V_ODM}, v7, 16, v7
        v_add_u32 v{self.V_WA}, {self.L_WT}, v2
        s_mov_b32 s{self.S_C0}, 0
        s_mov_b32 s{self.S_NC}, {NCH}
        s_mov_b32 s{self.S_P0}, 0
        s_mov_b32 s{self.S_SUB}, 0
        s_mov_b32 s{self.S_FIRST}, 1
        K2_WIN:
        ''')
        TB, AD, RM, EN, RK = 10, 20, 30, 40, 100
        A(f'''
        v_lshrrev_b32 v4, 4, v{L}
        v_lshlrev_b32 v5, 10, v4
        s_lshl_b32 s{self.S_T0}, s{self.S_W}, 12
        s_lshl_b32 s{self.S_T1}, s{self.S_B}, 2
        s_add_u32 s{self.S_T0}, s{self.S_T0}, s{self.S_T1}
        s_add_u32 s{self.S_T0}, s{self.S_T0}, {WS_TAB}
        ''')
        for p in range(NP):
            A(f'buffer_load_dword v{TB+p}, v5, {ws}, s{self.S_T0} offen')
            if p + 1 < NP: A(f's_add_u32 s{self.S_T0}, s{self.S_T0}, {NW*4096}')
        A(f'''
        s_cmp_lg_u32 s{self.S_W}, 0
        s_cbranch_scc1 K2_NOINIT
        v_lshlrev_b32 v6, 2, v{L}
        v_mov_b32 v7, 0
        v_cmp_eq_u32 vcc, {NPB}, v{L}
        v_mov_b32 v8, {2*NW}
        v_mov_b32 v9, 0xffff0000
        v_cndmask_b32 v7, v7, v8, vcc
        v_cmp_ge_u32 vcc, {NPB}, v{L}
        s_mov_b64 exec, vcc
        ds_write_b32 v6, v7 offset:{self.L_CNT}
        s_mov_b64 exec, 0xffff
        v_mov_b32 v8, 0x03ffffe0
        ds_write_b32 v6, v9 offset:{self.L_PAD+64}
        ds_write_b32 v6, v8 offset:{self.L_PAD+128}
        s_mov_b64 exec, -1
        K2_NOINIT:
        s_lshl_b32 s{self.S_T0}, s{self.S_C0}, 10
        s_add_u32 s{self.S_T0}, s{self.S_T0}, s{self.S_T1}
        s_add_u32 s{self.S_T0}, s{self.S_T0}, {WS_TAB}
        s_buffer_load_dword s{self.S_T2}, {ws}, s{self.S_T0}
        s_lshl_b32 s{self.S_T1}, s{self.S_W}, 2
        v_add_u32 v4, s{self.S_T1}, v4
        v_and_b32 v6, 15, v{L}
        s_waitcnt lgkmcnt(0)
        s_barrier
        s_lshr_b32 s{self.S_T2}, s{self.S_T2}, 16
        s_add_u32 s{self.S_T3}, s{self.S_P0}, {CAP}
        s_add_u32 s{self.S_NC0}, s{self.S_C0}, s{self.S_NC}
        s_mov_b32 s{self.S_NP0}, 0
        s_mov_b32 s{self.S_NSUB}, 0
        s_cmp_eq_u32 s{self.S_SUB}, 0
        s_cbranch_scc1 K2_NOSUB
        s_cmp_ge_u32 s{self.S_T3}, s{self.S_T2}
        s_cbranch_scc1 K2_SUBSET
        s_mov_b32 s{self.S_NC0}, s{self.S_C0}
        s_mov_b32 s{self.S_NP0}, s{self.S_T3}
        s_mov_b32 s{self.S_NSUB}, 1
        s_branch K2_SUBSET
        K2_NOSUB:
        s_mov_b32 s{self.S_T3}, 0xffff
        K2_SUBSET:
        s_cmp_ge_u32 s{self.S_NC0}, {NCH}
        s_cselect_b32 s{self.S_LAST}, 1, 0
        v_mov_b32 v9, 0
        ''')
        for p in range(NP):
            A(f's_waitcnt vmcnt({NP-1-p})')
            A(f'''
            v_lshrrev_b32 v7, 16, v{TB+p}
            v_subrev_u32 v8, s{self.S_C0}, v4
            v_min_u32 v7, s{self.S_T3}, v7
            v_cmp_gt_u32 vcc, s{self.S_NC}, v8
            v_subrev_u32 v7, s{self.S_P0}, v7
            v_and_b32 v8, 0xffff, v{TB+p}
            v_cndmask_b32 v7, 0, v7, vcc
            v_add3_u32 v8, v8, v6, s{self.S_P0}
            v_sub_u32 v{RM+p}, v7, v6
            v_mul_u32_u24 v8, 12, v8
            v_mul_u32_u24 v7, {CH*12}, v4
            v_cmp_lt_i32 s[{self.S_M+4*p}:{self.S_M+4*p+1}], 0, v{RM+p}
            v_cmp_lt_i32 s[{self.S_M+4*p+2}:{self.S_M+4*p+3}], 16, v{RM+p}
            v_add_u32 v{AD+p}, v7, v8
            v_max_i32 v9, v9, v{RM+p}
            v_add_u32 v4, {4*NW}, v4
            ''')
        A(f's_mov_b32 s{self.S_T0}, {WS_ENT}')
        for sub in range(2):
            for p in range(NP):
                m = self.S_M + 4 * p + 2 * sub
                r = EN + 4 * (sub * NP + p)
                A(f's_mov_b64 exec, s[{m}:{m+1}]\nbuffer_load_dwordx3 v[{r}:{r+2}], v{AD+p}, {ws}, s{self.S_T0} offen offset:{192*sub}')
        A('s_mov_b64 exec, -1\nv_mov_b32 v2, 1')
        RK = EN + 4 * 2 * NP
        G = 2 * NP
        for g in range(G):
            sub, p = divmod(g, NP); m = self.S_M + 4 * p + 2 * sub; r = EN + 4 * g
            A(f'''
            s_waitcnt vmcnt({G-1-g})
            s_mov_b64 exec, s[{m}:{m+1}]
            v_lshrrev_b32 v{r+3}, 26, v{r+2}
            v_lshlrev_b32 v3, 2, v{r+3}
            ds_add_rtn_u32 v{RK+g}, v3, v2 offset:{self.L_CNT}
            ''')
        def place(rk, r):
            return f'''
            v_min_u32 v{rk}, {CAP-1}, v{rk}
            v_mul_u32_u24 v{r+3}, {SLOT}, v{r+3}
            v_lshrrev_b32 v3, 4, v{rk}
            v_lshl_add_u32 v{r+3}, v{rk}, 2, v{r+3}
            v_lshl_add_u32 v{r+3}, v3, 7, v{r+3}
            ds_write2_b32 v{r+3}, v{r}, v{r+1} offset0:{self.L_SL//4} offset1:{self.L_SL//4+16}
            ds_write_b32 v{r+3}, v{r+2} offset:{self.L_SL+128}
            '''
        A('s_waitcnt lgkmcnt(0)')
        for g in range(G):
            sub, p = divmod(g, NP); m = self.S_M + 4 * p + 2 * sub
            A(f's_mov_b64 exec, s[{m}:{m+1}]')
            A(place(RK + g, EN + 4 * g))
        A(f'''
        s_mov_b64 exec, -1
        s_mov_b32 s{self.S_T1}, 32
        s_add_u32 s{self.S_T0}, s{self.S_T0}, 384
        K2_XLOOP:
        v_cmp_lt_i32 vcc, s{self.S_T1}, v9
        s_cbranch_vccz K2_XDONE
        ''')
        for p in range(NP):
            A(f'''
            v_cmp_lt_i32 vcc, s{self.S_T1}, v{RM+p}
            s_and_saveexec_b64 s[{self.S_M}:{self.S_M+1}], vcc
            s_cbranch_execz K2_XS{p}
            buffer_load_dwordx3 v[{EN}:{EN+2}], v{AD+p}, {ws}, s{self.S_T0} offen
            s_waitcnt vmcnt(0)
            v_lshrrev_b32 v{EN+3}, 26, v{EN+2}
            v_lshlrev_b32 v3, 2, v{EN+3}
            ds_add_rtn_u32 v{RK}, v3, v2 offset:{self.L_CNT}
            s_waitcnt lgkmcnt(0)
            ''')
            A(place(RK, EN))
            A(f'K2_XS{p}:\ns_mov_b64 exec, -1')
        A(f'''
        s_add_u32 s{self.S_T1}, s{self.S_T1}, 16
        s_add_u32 s{self.S_T0}, s{self.S_T0}, 192
        s_branch K2_XLOOP
        K2_XDONE:
        v_lshlrev_b32 v3, 2, v{L}
        v_cmp_gt_u32 vcc, {NPB}, v{L}
        v_mov_b32 v{self.V_CNT}, 0
        s_waitcnt vmcnt(0) lgkmcnt(0)
        s_barrier
        s_mov_b64 exec, vcc
        ds_read_b32 v{self.V_CNT}, v3 offset:{self.L_CNT}
        s_mov_b64 exec, -1
        s_waitcnt lgkmcnt(0)
        v_cmp_lt_u32 vcc, {CAP}, v{self.V_CNT}
        s_cbranch_vccz K2_FITS
        s_barrier
        s_cmp_gt_u32 s{self.S_NC}, 1
        s_cselect_b32 s{self.S_SUB}, 0, 1
        s_add_u32 s{self.S_NC}, s{self.S_NC}, 1
        s_lshr_b32 s{self.S_NC}, s{self.S_NC}, 1
        s_branch K2_WIN
        K2_FITS:
        s_mov_b32 s{self.S_TK}, s{self.S_W}
        ''')
        self.setup_next(A, 'A')
        A(f'''
        s_cmp_eq_u32 s{self.S_NSTEPS}, 0
        s_cbranch_scc1 K2_DONE
        v_add_u32 v{self.V_EA}, s{self.S_NSLOT}, v{self.V_EL}
        s_add_u32 s{self.S_T0}, s{self.S_W}, {NW}
        ds_read2_b32 v[{self.E0}:{self.E0+1}], v{self.V_EA} offset0:0 offset1:16
        ds_read_b32 v{self.E0+2}, v{self.V_EA} offset:128
        v_mov_b32 v{self.V_TK}, s{self.S_T0}
        s_waitcnt lgkmcnt(0)
        ''')
        for g in self.dma_items():
            for x in g: A(x)
        for x in self.zero_uz(): A(x)
        return A.l

    def epilogue(self):
        A = Asm(); L = self.V_LANE
        ws = f's[{self.S_WS}:{self.S_WS+3}]'
        FR, AC, BB = 0, 80, 144
        A(f'''
        K2_DONE:
        v_lshlrev_b32 v{self.T0}, 4, v{L}
        s_cmp_ge_u32 s{self.S_W}, 4
        s_cbranch_scc1 K2_NOFR
        s_lshr_b32 s{self.S_T0}, s{self.S_W}, 1
        s_mul_i32 s{self.S_T0}, s{self.S_T0}, 20480
        s_add_u32 s{self.S_T0}, s{self.S_T0}, {WS_FRAG}
        s_waitcnt vmcnt(0)
        ''')
        for ks in range(20):
            if ks and ks % 4 == 0: A(f's_add_u32 s{self.S_T0}, s{self.S_T0}, 4096')
            A(f'buffer_load_dwordx4 v[{FR+4*ks}:{FR+4*ks+3}], v{self.T0}, {ws}, s{self.S_T0} offen offset:{(ks%4)*1024}')
        A(f'''
        K2_NOFR:
        s_waitcnt lgkmcnt(0)
        s_barrier
        ''')
        if self.dump:
            A(f'''
            s_mul_i32 s{self.S_T1}, s{self.S_B}, 0x12000
            s_add_u32 s{self.S_T1}, s{self.S_T1}, {1<<25}
            s_mov_b32 s{self.S_WS+2}, {1<<27}
            s_lshl_b32 s{self.S_T2}, s{self.S_W}, 10
            v_add_u32 v200, s{self.S_T2}, v{self.T0}
            ''')
            for k in range(9):
                A(f'''
                ds_read_b128 v[204:207], v200 offset:{self.L_SL}
                s_waitcnt lgkmcnt(0)
                buffer_store_dwordx4 v[204:207], v200, {ws}, s{self.S_T1} offen
                s_waitcnt vmcnt(0)
                v_add_u32 v200, {self.NW*1024}, v200
                ''')
            A(f's_mov_b32 s{self.S_WS+2}, {WS_END}')
        A(f'''
        s_cmp_ge_u32 s{self.S_W}, 4
        s_cbranch_scc1 K2_NEXTWIN
        s_and_b32 s{self.S_T0}, s{self.S_W}, 1
        s_lshl_b32 s{self.S_T0}, s{self.S_T0}, 5
        v_and_b32 v{self.T0+1}, 31, v{L}
        v_add_u32 v{self.T0+1}, s{self.S_T0}, v{self.T0+1}
        v_lshrrev_b32 v{self.T0+2}, 5, v{L}
        v_mul_u32_u24 v{self.T0+3}, {SLOT}, v{self.T0+1}
        v_lshl_add_u32 v{self.T0+3}, v{self.T0+2}, 4, v{self.T0+3}
        ''')
        jobs = [(0, ks, ks * 32) for ks in range(8)]
        for j in range(3):
            jobs += [(1 + j, 8 + ks, 256 + 256 * j + ks * 32) for ks in range(8)]
            jobs += [(1 + j, 16 + ks, 1024 + 128 * j + ks * 32) for ks in range(4)]
        NB = 8
        def rd(i): return f'ds_read_b128 v[{BB+4*(i%NB)}:{BB+4*(i%NB)+3}], v{self.T0+3} offset:{self.L_SL+jobs[i][2]}'
        for i in range(NB - 1): A(rd(i))
        A('s_waitcnt vmcnt(0)')
        seen = set()
        for i, (part, ks, off) in enumerate(jobs):
            if i + NB - 1 < len(jobs): A(rd(i + NB - 1)); out = NB - 1
            else: out = len(jobs) - 1 - i
            A(f's_waitcnt lgkmcnt({out})')
            d = AC + 16 * part; b = BB + 4 * (i % NB)
            c = f'v[{d}:{d+15}]' if part in seen else '0'
            seen.add(part)
            A(f'v_mfma_f32_32x32x16_bf16 v[{d}:{d+15}], v[{FR+4*ks}:{FR+4*ks+3}], v[{b}:{b+3}], {c}')
        A(f'''
        s_lshl_b32 s{self.S_T0}, s{self.S_B}, 2
        s_add_u32 s{self.S_T0}, s{self.S_T0}, s{self.S_W}
        s_lshl_b32 s{self.S_T0}, s{self.S_T0}, 14
        s_nop 7
        s_cmp_lg_u32 s{self.S_FIRST}, 0
        s_cbranch_scc1 K2_NOLOADP
        s_mov_b32 s{self.S_T1}, s{self.S_T0}
        ''')
        for k in range(16):
            if k and k % 4 == 0: A(f's_add_u32 s{self.S_T1}, s{self.S_T1}, 4096')
            A(f'buffer_load_dwordx4 v[{4*k}:{4*k+3}], v{self.T0}, {ws}, s{self.S_T1} offen offset:{(k%4)*1024} sc1')
        A('s_waitcnt vmcnt(0)')
        for k in range(64): A(f'v_add_f32 v{AC+k}, v{AC+k}, v{k}')
        A(f'''
        K2_NOLOADP:
        s_cmp_lg_u32 s{self.S_LAST}, 0
        s_cbranch_scc1 K2_FINAL
        ''')
        for k in range(16):
            if k and k % 4 == 0: A(f's_add_u32 s{self.S_T0}, s{self.S_T0}, 4096')
            A(f'buffer_store_dwordx4 v[{AC+4*k}:{AC+4*k+3}], v{self.T0}, {ws}, s{self.S_T0} offen offset:{(k%4)*1024} sc1')
        A(f'''
        s_waitcnt vmcnt(0)
        s_branch K2_NEXTWIN
        K2_FINAL:
        s_mul_i32 s{self.S_T0}, s{self.S_B}, {NPB*512}
        s_lshr_b32 s{self.S_T1}, s{self.S_W}, 1
        s_lshl_b32 s{self.S_T1}, s{self.S_T1}, 6
        s_add_u32 s{self.S_T0}, s{self.S_T0}, s{self.S_T1}
        v_lshlrev_b32 v{self.T0+3}, 9, v{self.T0+1}
        v_lshl_add_u32 v{self.T0+3}, v{self.T0+2}, 5, v{self.T0+3}
        v_cmp_gt_u32 vcc, s{self.S_NN}, v{self.T0+1}
        ''')
        for k in range(16): A(f'v_mul_f32 v{k}, 0xbfb8aa3b, v{AC+k}')
        for k in range(16): A(f'v_exp_f32 v{k}, v{k}')
        for k in range(16): A(f'v_add_f32 v{k}, 1.0, v{k}')
        for k in range(16): A(f'v_rcp_f32 v{k}, v{k}')
        for k in range(8): A(f'v_cvt_pk_bf16_f32 v{16+k}, v{AC+2*k}, v{AC+2*k+1}')
        for j in range(3):
            for k in range(16): A(f'v_mul_f32 v{AC+16+16*j+k}, v{AC+16+16*j+k}, v{k}')
            for k in range(8): A(f'v_cvt_pk_bf16_f32 v{24+8*j+k}, v{AC+16+16*j+2*k}, v{AC+16+16*j+2*k+1}')
        A('s_mov_b64 exec, vcc')
        for part in range(4):
            for hf in range(2):
                r = 16 + 8 * part + 4 * hf
                A(f'buffer_store_dwordx4 v[{r}:{r+3}], v{self.T0+3}, s[{self.S_OUT}:{self.S_OUT+3}], s{self.S_T0} offen offset:{128*part+16*hf}')
        A(f'''
        s_mov_b64 exec, -1
        K2_NEXTWIN:
        s_cmp_lg_u32 s{self.S_LAST}, 0
        s_cbranch_scc1 K2_END
        s_mov_b32 s{self.S_C0}, s{self.S_NC0}
        s_mov_b32 s{self.S_P0}, s{self.S_NP0}
        s_mov_b32 s{self.S_SUB}, s{self.S_NSUB}
        s_mov_b32 s{self.S_FIRST}, 0
        s_waitcnt vmcnt(0) lgkmcnt(0)
        s_barrier
        s_branch K2_WIN
        K2_END:
        s_endpgm
        ''')
        return A.l

    def gen(self):
        pro, ns, s1, s2, con, epi = self.prologue(), self.node_start(), self.step(True), self.step(False), self.contract(), self.epilogue()
        A = Asm()
        A.ext(pro); A('K2_NODE:'); A.ext(ns); A.ext(s1)
        A('s_cbranch_scc0 K2_CON\nK2_REST:'); A.ext(s2); A('s_cbranch_scc1 K2_REST\nK2_CON:'); A.ext(con)
        A(f's_cmp_lg_u32 s{self.S_NSTEPS}, 0\ns_cbranch_scc1 K2_NODE')
        A.ext(epi)
        br = ['s_nop 0']
        bad = check(pro + ns + s1 + br + s2 + br + s2 + br + con + br + ns + s1 + br + con + br + epi, 'k2')
        return A.l, bad


def build(NW=8, eflag='nt', xflag='', dump=0):
    k1 = gen_k1()
    bad = check(k1, 'k1')
    k2o = K2(NW, eflag, xflag, dump)
    k2, b2 = k2o.gen()
    assert bad + b2 == 0, 'hazards'
    hdr = f'''; Equiformer tensor-product message passing, two launches.
; @launch kernel=sort_edges_kernel grid=(256,1,1) block=(832,1,1) lds={K1_LDS}
; @launch kernel=aggregate_kernel grid=(256,1,1) block=({NW*64},1,1) lds={k2o.LDS}
.amdgcn_target "amdgcn-amd-amdhsa--gfx950"
.text
'''
    s = hdr
    for name, body in (('sort_edges_kernel', k1), ('aggregate_kernel', k2)):
        s += f'.globl {name}\n.p2align 8\n.type {name},@function\n' + '\n'.join(body) + '\n'
    s += desc('sort_edges_kernel', 48, 64) + desc('aggregate_kernel', 256, 102)
    return s


if __name__ == '__main__':
    out = sys.argv[1] if len(sys.argv) > 1 else 'gather_scatter__tensor_product_equiv_equiformer__graph.s'
    kw = dict(a.split('=') for a in sys.argv[2:])
    for k in kw:
        if kw[k].isdigit(): kw[k] = int(kw[k])
    open(out, 'w').write(build(**kw))
    print('wrote', out)
```

```python
import sys
from hazard import check

N, E = 12500, 800000
NPB = 49
NCH, CH = 250, 3200
CAP = 112
SLOT = 1424
WS_PART = 0
WS_ENT = 16777216
WS_WT = WS_ENT + NCH * CH * 12
WS_FRAG = WS_WT + 20480
WS_TAB = WS_FRAG + 40960
WS_END = WS_TAB + NCH * 1024
DPPM = 'row_mask:0xf bank_mask:0xf'


class Asm:
    def __init__(self): self.l = []
    def __call__(self, s):
        for x in s.strip('\n').split('\n'):
            self.l.append(x.strip() if x.strip().endswith(':') else '    ' + x.strip())
    def ext(self, lines): self.l += lines


def srd(A, d, lo, hi, size):
    A(f's_mov_b32 s{d}, s{lo}\ns_and_b32 s{d+1}, s{hi}, 0xffff\ns_mov_b32 s{d+2}, {size}\ns_mov_b32 s{d+3}, 0x20000')


def desc(name, vgpr, sgpr):
    return f'''.section .rodata,"a"
.p2align 6
.amdhsa_kernel {name}
  .amdhsa_next_free_vgpr {vgpr}
  .amdhsa_next_free_sgpr {sgpr}
  .amdhsa_accum_offset {(vgpr + 3) // 4 * 4}
  .amdhsa_group_segment_fixed_size 0
  .amdhsa_kernarg_size 96
  .amdhsa_user_sgpr_count 2
  .amdhsa_user_sgpr_kernarg_segment_ptr 1
  .amdhsa_system_sgpr_workgroup_id_x 1
.end_amdhsa_kernel
'''


K1_CNT, K1_OFF, K1_LDS = 38400, 39424, 40448


def gen_k1():
    A = Asm()
    A('''
    sort_edges_kernel:
    s_cmp_ge_u32 s2, 256
    s_cbranch_scc1 K1_END
    s_load_dwordx2 s[4:5], s[0:1], 8
    s_load_dwordx4 s[8:11], s[0:1], 24
    s_load_dwordx4 s[32:35], s[0:1], 40
    s_load_dwordx2 s[36:37], s[0:1], 56
    s_load_dwordx2 s[6:7], s[0:1], 88
    v_lshlrev_b32 v1, 4, v0
    v_mul_u32_u24 v2, 24, v0
    v_lshrrev_b32 v3, 6, v0
    v_and_b32 v40, 63, v0
    v_readfirstlane_b32 s38, v3
    s_waitcnt lgkmcnt(0)
    ''')
    srd(A, 12, 4, 5, E * 6)
    srd(A, 16, 8, 9, E * 4)
    srd(A, 20, 10, 11, E * 4)
    srd(A, 24, 6, 7, WS_END)
    A(f'''
    s_cmp_ge_u32 s2, {NCH}
    s_cbranch_scc1 K1_PREP
    s_mul_i32 s28, s2, {CH * 4}
    s_mul_i32 s29, s2, {CH * 6}
    v_cmp_gt_u32 vcc, {CH // 4}, v0
    s_mov_b64 s[30:31], vcc
    s_mov_b64 exec, vcc
    buffer_load_dwordx4 v[4:7], v1, s[20:23], s28 offen
    buffer_load_dwordx4 v[8:11], v1, s[16:19], s28 offen
    buffer_load_dwordx4 v[12:15], v2, s[12:15], s29 offen
    buffer_load_dwordx2 v[16:17], v2, s[12:15], s29 offen offset:16
    s_mov_b64 exec, -1
    v_cmp_gt_u32 vcc, 0x100, v0
    v_lshlrev_b32 v18, 2, v0
    v_mov_b32 v19, 0
    s_mov_b64 exec, vcc
    ds_write_b32 v18, v19 offset:{K1_CNT}
    s_mov_b64 exec, -1
    s_mul_i32 s39, s2, {CH * 32}
    v_lshl_add_u32 v32, v0, 7, s39
    v_mov_b32 v41, 1
    s_waitcnt lgkmcnt(0)
    s_barrier
    s_mov_b64 exec, s[30:31]
    s_waitcnt vmcnt(3)
    ''')
    for i in range(4): A(f'v_mul_u32_u24 v{20+i}, 21400, v{4+i}')
    for i in range(4): A(f'v_lshrrev_b32 v{20+i}, 20, v{20+i}')
    for i in range(4): A(f'v_mul_u32_u24 v{28+i}, {NPB}, v{20+i}')
    for i in range(4): A(f'v_lshlrev_b32 v{20+i}, 2, v{20+i}')
    for i in range(4): A(f'ds_add_rtn_u32 v{24+i}, v{20+i}, v41 offset:{K1_CNT}')
    for i in range(4): A(f'v_sub_u32 v{28+i}, v{4+i}, v{28+i}')
    for i in range(1, 4): A(f'v_add_u32 v{32+i}, {32*i}, v32')
    for i in range(4): A(f'v_lshl_or_b32 v{28+i}, v{28+i}, 26, v{32+i}')
    A('''
    s_mov_b32 s40, 0x05040100
    s_mov_b32 s41, 0x05040302
    s_waitcnt vmcnt(0)
    v_alignbit_b32 v33, v14, v13, 16
    v_alignbit_b32 v35, v17, v16, 16
    v_perm_b32 v36, v8, v13, s40
    v_perm_b32 v37, v9, v14, s41
    v_perm_b32 v38, v10, v16, s40
    v_perm_b32 v39, v11, v17, s41
    v_mov_b32 v32, v12
    v_mov_b32 v34, v15
    v_xor_b32 v36, 0x8000, v36
    v_xor_b32 v37, 0x8000, v37
    v_xor_b32 v38, 0x8000, v38
    v_xor_b32 v39, 0x8000, v39
    s_mov_b64 exec, -1
    v_lshlrev_b32 v42, 4, v40
    s_waitcnt lgkmcnt(0)
    s_barrier
    ''')
    A(f'''
    ds_read_b128 v[4:7], v42 offset:{K1_CNT}
    s_waitcnt lgkmcnt(0)
    v_add_u32 v8, v4, v5
    v_add_u32 v9, v8, v6
    v_add_u32 v10, v9, v7
    v_mov_b32 v11, v10
    s_nop 1
    ''')
    for sh in ('row_shr:1', 'row_shr:2', 'row_shr:4', 'row_shr:8'):
        A(f'v_add_u32_dpp v11, v11, v11 {sh} {DPPM}\ns_nop 1')
    A('v_add_u32_dpp v11, v11, v11 row_bcast:15 row_mask:0xa bank_mask:0xf\ns_nop 1')
    A('v_add_u32_dpp v11, v11, v11 row_bcast:31 row_mask:0xc bank_mask:0xf')
    A(f'''
    v_sub_u32 v12, v11, v10
    v_add_u32 v13, v12, v4
    v_add_u32 v14, v12, v8
    v_add_u32 v15, v12, v9
    ds_write_b128 v42, v[12:15] offset:{K1_OFF}
    s_cmp_lg_u32 s38, 0
    s_cbranch_scc1 K1_NOTAB
    v_lshl_or_b32 v44, v4, 16, v12
    v_lshl_or_b32 v45, v5, 16, v13
    v_lshl_or_b32 v46, v6, 16, v14
    v_lshl_or_b32 v47, v7, 16, v15
    s_lshl_b32 s42, s2, 10
    s_add_u32 s42, s42, {WS_TAB}
    buffer_store_dwordx4 v[44:47], v42, s[24:27], s42 offen
    K1_NOTAB:
    s_mov_b64 exec, s[30:31]
    ''')
    for i in range(4): A(f'ds_read_b32 v{4+i}, v{20+i} offset:{K1_OFF}')
    for i in range(4):
        A(f's_waitcnt lgkmcnt({3-i})\nv_add_u32 v{4+i}, v{4+i}, v{24+i}\nv_mul_u32_u24 v{4+i}, 12, v{4+i}')
    for i in range(4):
        A(f'ds_write2_b32 v{4+i}, v{32+i}, v{36+i} offset0:0 offset1:1\nds_write_b32 v{4+i}, v{28+i} offset:8')
    A(f'''
    s_mul_i32 s42, s2, {CH * 12}
    s_add_u32 s42, s42, {WS_ENT}
    s_add_u32 s43, s42, 12800
    s_add_u32 s44, s42, 25600
    s_waitcnt lgkmcnt(0)
    s_barrier
    ds_read_b128 v[4:7], v1
    ds_read_b128 v[8:11], v1 offset:12800
    ds_read_b128 v[12:15], v1 offset:25600
    s_waitcnt lgkmcnt(2)
    buffer_store_dwordx4 v[4:7], v1, s[24:27], s42 offen
    s_waitcnt lgkmcnt(1)
    buffer_store_dwordx4 v[8:11], v1, s[24:27], s43 offen
    s_waitcnt lgkmcnt(0)
    buffer_store_dwordx4 v[12:15], v1, s[24:27], s44 offen
    s_endpgm
    K1_PREP:
    s_cmp_lg_u32 s2, {NCH}
    s_cbranch_scc1 K1_FRAG
    ''')
    srd(A, 12, 32, 33, 16 * 320 * 2)
    A('s_cmp_ge_u32 s38, 10\ns_cbranch_scc1 K1_END')
    for ps in range(2):
        A(f'''
        s_add_u32 s39, s38, {10 * ps}
        s_and_b32 s40, s39, 1
        s_lshr_b32 s41, s39, 1
        s_mul_i32 s40, s40, {8 * 640}
        s_lshl_b32 s41, s41, 6
        s_add_u32 s40, s40, s41
        v_lshrrev_b32 v4, 5, v40
        v_mul_u32_u24 v4, {4 * 640}, v4
        v_and_b32 v5, 31, v40
        v_lshl_add_u32 v4, v5, 1, v4
        v_mov_b32 v8, 0
        v_mov_b32 v9, 0
        v_mov_b32 v10, 0
        v_mov_b32 v11, 0
        ''')
        for r in range(4): A(f'buffer_load_short_d16_hi v{8+r}, v4, s[12:15], s40 offen offset:{640*r}')
        A(f'''
        s_lshl_b32 s41, s39, 10
        s_add_u32 s41, s41, {WS_WT}
        v_lshlrev_b32 v6, 4, v40
        s_waitcnt vmcnt(0)
        buffer_store_dwordx4 v[8:11], v6, s[24:27], s41 offen
        s_waitcnt vmcnt(0)
        ''')
    A('s_endpgm\nK1_FRAG:')
    srd(A, 12, 34, 35, 128 * 64 * 2)
    srd(A, 16, 36, 37, 192 * 64 * 2)
    A(f'''
    s_cmp_ge_u32 s38, 8
    s_cbranch_scc1 K1_END
    s_sub_u32 s39, s2, {NCH + 1}
    s_lshl_b32 s39, s39, 3
    s_add_u32 s39, s39, s38
    s_cmp_ge_u32 s39, 20
    s_cselect_b32 s40, 20, 0
    s_cselect_b32 s41, 64, 0
    s_sub_u32 s40, s39, s40
    v_bfe_u32 v4, v40, 2, 1
    v_bfe_u32 v5, v40, 3, 2
    v_and_b32 v6, 3, v40
    v_lshlrev_b32 v4, 4, v4
    v_lshl_add_u32 v4, v5, 2, v4
    v_add_u32 v4, v4, v6
    v_lshl_add_u32 v4, v4, 1, s41
    v_lshrrev_b32 v5, 5, v40
    s_lshl_b32 s45, s39, 10
    s_add_u32 s45, s45, {WS_FRAG}
    v_lshlrev_b32 v7, 4, v40
    s_cmp_ge_u32 s40, 16
    s_cbranch_scc1 K1_FRAGC
    v_lshl_add_u32 v4, v5, 9, v4
    s_and_b32 s43, s40, 7
    s_lshl_b32 s43, s43, 10
    s_add_u32 s44, s43, 8192
    s_cmp_ge_u32 s40, 8
    s_cbranch_scc1 K1_FRAGB
    ''')
    for n in range(4):
        A(f'buffer_load_ushort v{8+n}, v4, s[12:15], s43 offen offset:{128*n}')
        A(f'buffer_load_ushort v{12+n}, v4, s[12:15], s44 offen offset:{128*n}')
    A('s_branch K1_FRAGST\nK1_FRAGB:')
    for n in range(4):
        A(f'buffer_load_ushort v{8+n}, v4, s[16:19], s43 offen offset:{128*n}')
        A(f'buffer_load_ushort v{12+n}, v4, s[16:19], s44 offen offset:{128*n}')
    A('''
    s_branch K1_FRAGST
    K1_FRAGC:
    v_lshl_add_u32 v4, v5, 10, v4
    s_sub_u32 s43, s40, 16
    s_lshl_b32 s43, s43, 11
    s_add_u32 s43, s43, 16384
    ''')
    for n in range(4):
        A(f'buffer_load_ushort v{8+n}, v4, s[16:19], s43 offen offset:{256*n}')
        A(f'buffer_load_ushort v{12+n}, v4, s[16:19], s43 offen offset:{256*n+128}')
    A('''
    K1_FRAGST:
    s_waitcnt vmcnt(0)
    v_lshl_or_b32 v8, v12, 16, v8
    v_lshl_or_b32 v9, v13, 16, v9
    v_lshl_or_b32 v10, v14, 16, v10
    v_lshl_or_b32 v11, v15, 16, v11
    buffer_store_dwordx4 v[8:11], v7, s[24:27], s45 offen
    K1_END:
    s_endpgm
    ''')
    return A.l


class K2:
    def __init__(self, NW=8, eflag='nt', xflag='', dump=0, stamp=0):
        self.stamp = stamp; self.dump = dump; self.NW = NW; self.eflag = eflag; self.xflag = xflag
        self.XROW = 1088
        self.XW = 7 * self.XROW + 1024
        self.L_CNT = 0
        self.L_TK = NPB * 4
        self.L_PAD = self.L_TK + 4 - 64
        self.L_SL = 336
        self.L_WT = self.L_SL + NPB * SLOT - 16
        self.L_X = self.L_WT + 20480
        self.L_A = self.L_X + NW * self.XW
        self.LDS = self.L_A + ((NW + 1) // 2) * 1024
        assert self.LDS <= 163840, self.LDS
        self.NP = -(-NCH // (4 * NW))

    blk = dict(S0=0, Vz=8, Vx=16, Vy=24, Ux=32, Cy=40, Cx=48, Uy=56, Uz=64, D=72, Cz=80)
    B0 = 176
    OA, OB, OC = 208, 212, 216
    AU = 220
    T0 = 228
    MA, MB, MC, ME = 232, 233, 234, 235
    E0 = 236
    V_TRB, V_TRA, V_EL, V_XL, V_EAP, V_ODM, V_WA, V_CNT, V_TK, V_EA, V_LANE, V_SRC = range(239, 251)
    S_X, S_EA, S_WS, S_OUT = 8, 12, 16, 20
    S_W, S_B, S_NN = 3, 24, 25
    S_C0, S_NC, S_P0, S_SUB, S_FIRST, S_LAST, S_NC0, S_NP0, S_NSUB = range(26, 35)
    S_CUR, S_STEPS, S_ECUR, S_EPTR, S_NSLOT, S_NSTEPS, S_TK, S_XB, S_AB = range(35, 44)
    S_T0, S_T1, S_T2, S_T3 = 44, 45, 46, 47
    S_BOT, S_AMASK = 48, 50
    S_EMASK = 52
    S_M = 54

    def st(self, A, k):
        if self.stamp:
            A(f's_memrealtime s[100:101]\ns_waitcnt lgkmcnt(0)\nv_writelane_b32 v255, s100, {k}')

    def acc(self, name, t): return t * 88 + self.blk[name]
    def Breg(self, m, t): return self.B0 + (m * 2 + t) * 4

    def setup_next(self, A, tag):
        t0, t1, t2 = self.T0, self.T0 + 1, self.T0 + 2
        z = self.B0
        A(f'''
        s_mov_b32 s{self.S_NSLOT}, {self.L_PAD}
        s_mov_b32 s{self.S_NSTEPS}, 0
        v_mov_b32 v{z}, 0
        v_mov_b32 v{z+1}, 0xffff0000
        s_cmp_lt_u32 s{self.S_TK}, s{self.S_NN}
        s_cbranch_scc0 SN_{tag}
        v_readlane_b32 s{self.S_T0}, v{self.V_CNT}, s{self.S_TK}
        s_mul_i32 s{self.S_NSLOT}, s{self.S_TK}, {SLOT}
        v_mov_b32 v{z+2}, 0x03ffffe0
        s_add_u32 s{self.S_NSLOT}, s{self.S_NSLOT}, {self.L_SL}
        s_add_u32 s{self.S_T1}, s{self.S_T0}, 15
        s_lshr_b32 s{self.S_T1}, s{self.S_T1}, 4
        s_max_u32 s{self.S_NSTEPS}, s{self.S_T1}, 1
        s_lshl_b32 s{self.S_T1}, s{self.S_NSTEPS}, 4
        v_add_u32 v{t0}, s{self.S_T0}, v{self.V_LANE}
        v_cmp_gt_u32 vcc, s{self.S_T1}, v{t0}
        v_lshrrev_b32 v{t1}, 4, v{t0}
        v_lshl_add_u32 v{t2}, v{t0}, 2, s{self.S_NSLOT}
        v_lshl_add_u32 v{t2}, v{t1}, 7, v{t2}
        s_mov_b64 exec, vcc
        ds_write2_b32 v{t2}, v{z}, v{z+1} offset0:0 offset1:16
        ds_write_b32 v{t2}, v{z+2} offset:128
        s_mov_b64 exec, -1
        SN_{tag}:
        ''')

    def dma_items(self):
        t = self.T0
        it = []
        it.append([f'v_lshlrev_b32_sdwa v{self.V_SRC}, 9, v{self.E0+1} dst_sel:DWORD dst_unused:UNUSED_PAD src0_sel:DWORD src1_sel:WORD_1',
                   f'v_and_or_b32 v{self.V_EA}, v{self.E0+2}, s{self.S_EMASK}, v{self.V_EAP}',
                   f's_mov_b32 m0, s{self.S_AB}',
                   f's_mov_b64 exec, s[{self.S_AMASK}:{self.S_AMASK+1}]',
                   f'buffer_load_dwordx4 v{self.V_EA}, s[{self.S_EA}:{self.S_EA+3}], 0 offen {self.eflag} lds',
                   's_mov_b64 exec, -1'])
        for j in range(8):
            it.append([f's_add_u32 m0, s{self.S_XB}, {j*self.XROW}',
                       f'v_add_u32_dpp v{self.V_EA}, v{self.V_SRC}, v{self.V_XL} row_newbcast:{j} {DPPM}',
                       f'buffer_load_dwordx4 v{self.V_EA}, s[{self.S_X}:{self.S_X+3}], 0 offen {self.xflag} lds'])
        return it

    def build_op(self, dst, m):
        t = self.T0
        o = []
        for n in range(4):
            a, b = t + (2 * n) % 4, t + (2 * n) % 4 + 1
            o.append(f'v_mul_f32_dpp v{a}, v{m}, v{self.AU+2*n} row_newbcast:{2*n} {DPPM}')
            o.append(f'v_mul_f32_dpp v{b}, v{m}, v{self.AU+2*n+1} row_newbcast:{2*n+1} {DPPM}')
            o.append(f'v_cvt_pk_bf16_f32 v{dst+n}, v{a}, v{b}')
        return o

    def step(self, first):
        A = Asm()
        t = self.T0; e = self.E0
        bot = f's[{self.S_BOT}:{self.S_BOT+1}]'
        A(f'''
        v_lshlrev_b32 v{t}, 16, v{e}
        v_and_b32 v{t+1}, 0xffff0000, v{e}
        v_lshlrev_b32 v{t+2}, 16, v{e+1}
        s_add_u32 s{self.S_ECUR}, s{self.S_ECUR}, 192
        s_cmp_eq_u32 s{self.S_STEPS}, 1
        s_cselect_b32 s{self.S_EPTR}, s{self.S_NSLOT}, s{self.S_ECUR}
        v_cndmask_b32_e64 v{self.MA}, 1.0, v{t+2}, {bot}
        v_cndmask_b32_e64 v{self.MB}, v{t}, v{t+1}, {bot}
        v_cndmask_b32_e64 v{self.MC}, v{t+2}, 1.0, {bot}
        v_cndmask_b32_e64 v{self.ME}, v{t+1}, -v{t}, {bot}
        v_add_u32 v{self.V_EA}, s{self.S_EPTR}, v{self.V_EL}
        s_waitcnt vmcnt(0)
        ds_read_b64_tr_b16 v[{self.OC}:{self.OC+1}], v{self.V_TRA}
        ds_read_b64_tr_b16 v[{self.OC+2}:{self.OC+3}], v{self.V_TRA} offset:64
        ds_read2_b32 v[{e}:{e+1}], v{self.V_EA} offset0:0 offset1:16
        ds_read_b32 v{e+2}, v{self.V_EA} offset:128
        ''')
        rd = []
        for m in range(4):
            for tt in range(2):
                for q in range(2):
                    b = self.Breg(m, tt) + 2 * q
                    rd.append(f'ds_read_b64_tr_b16 v[{b}:{b+1}], v{self.V_TRB} offset:{q*4*self.XROW + m*128 + tt*64}')
        for r in rd[:8]: A(r)
        A('s_waitcnt lgkmcnt(10)')
        up = []
        for n in range(4):
            up.append(f'v_lshlrev_b32 v{self.AU+2*n}, 16, v{self.OC+n}')
            up.append(f'v_and_b32 v{self.AU+2*n+1}, 0xffff0000, v{self.OC+n}')
        for k in range(8): A(up[k]); A(rd[8 + k])
        for x in self.build_op(self.OA, self.MA): A(x)
        A('s_waitcnt lgkmcnt(0)')

        def mf(win, tt, op, m, zero):
            d = self.acc(win, tt); b = self.Breg(m, tt)
            c = '0' if (first and zero) else f'v[{d}:{d+15}]'
            return f'v_mfma_f32_32x32x16_bf16 v[{d}:{d+15}], v[{op}:{op+3}], v[{b}:{b+3}], {c}'
        seq = [('S0', self.OA, 0, 1), ('Ux', self.OA, 1, 1), ('Vx', self.OB, 0, 1), ('D', self.OB, 1, 1),
               ('Cx', self.OC, 2, 1), ('Uz', self.OA, 3, 0), ('Cy', self.OB, 3, 0), ('D', self.OC, 2, 0)]
        M = [mf(w, tt, op, m, z) for (w, op, m, z) in seq for tt in range(2)]
        dma = self.dma_items()
        ob = self.build_op(self.OB, self.MB)
        oc = self.build_op(self.OC, self.MC)
        oe = self.build_op(self.OC, self.ME)
        od = [f'v_xor_b32 v{self.OA+n}, v{self.V_ODM}, v{self.OA+n}' for n in range(4)]
        fill = [[] for _ in range(16)]
        fill[0] = dma[0] + dma[1] + ob[0:3]
        fill[1] = dma[2] + ob[3:6] + dma[3]
        fill[2] = dma[4] + ob[6:9] + dma[5]
        fill[3] = ob[9:12] + dma[6] + dma[7] + dma[8]
        fill[4] = oc[0:3] + od[0:2]
        fill[5] = oc[3:6] + od[2:4]
        fill[6] = oc[6:9]
        fill[7] = oc[9:12] + ['s_nop 1']
        fill[8] = ['s_nop 1']
        fill[9] = oe[0:3]
        fill[10] = oe[3:6]
        fill[11] = oe[6:9]
        fill[12] = oe[9:12]
        fill[13] = ['s_nop 0']
        A('s_nop 0')
        for k in range(16):
            A(M[k])
            for x in fill[k]: A(x)
        A(f's_sub_u32 s{self.S_STEPS}, s{self.S_STEPS}, 1\ns_cmp_lg_u32 s{self.S_STEPS}, 0')
        return A.l

    def contract(self):
        A = Asm()
        groups = [(0, ['S0']), (2, ['Vx', 'Vy', 'Vz']), (3, ['Ux', 'Uy', 'Uz']), (4, ['Cx', 'Cy', 'Cz']), (1, ['D'])]
        bufs = [self.B0, self.B0 + 16]
        def rd(g):
            p = groups[g][0]; b = bufs[g % 2]
            o = []
            for tt in range(2):
                for q in range(2):
                    r = b + tt * 8 + q * 4
                    o.append(f'ds_read_b128 v[{r}:{r+3}], v{self.V_WA} offset:{((p*2+tt)*2+q)*1024}')
            return o
        for x in rd(0) + rd(1): A(x)
        for g, (p, names) in enumerate(groups):
            A(f's_waitcnt lgkmcnt({4 if g < 4 else 0})')
            b = bufs[g % 2]
            for rho in range(8):
                for tt in range(2):
                    for nm in names:
                        a = self.acc(nm, tt); w = b + tt * 8 + rho
                        A(f'v_mul_f32 v{a}, v{a}, v{w}' if rho == 0 else f'v_fmac_f32 v{a}, v{a+rho}, v{w}')
            if g + 2 < 5:
                for x in rd(g + 2): A(x)
        t = self.T0
        A(f'v_lshl_add_u32 v{t}, v{self.V_LANE}, 2, s{self.S_CUR}\nv_lshl_add_u32 v{t+1}, v{self.V_LANE}, 1, s{self.S_CUR}')
        order = ['S0', 'Vx', 'Vy', 'Vz', 'Ux', 'Uy', 'Uz', 'Cx', 'Cy', 'Cz', 'D']
        for nm in order: A(f'v_permlane32_swap_b32 v{self.acc(nm,0)}, v{self.acc(nm,1)}')
        for nm in order: A(f'v_add_f32 v{self.acc(nm,0)}, v{self.acc(nm,0)}, v{self.acc(nm,1)}')
        r = lambda nm: f'v{self.acc(nm,0)}'
        o = self.OA
        A(f'''
        v_cvt_pk_bf16_f32 v{o+1}, {r('Vx')}, {r('Ux')}
        v_cvt_pk_bf16_f32 v{o+2}, {r('Vy')}, {r('Uy')}
        v_cvt_pk_bf16_f32 v{o+3}, -{r('Vz')}, {r('Uz')}
        v_cvt_pk_bf16_f32 v{o+4}, {r('Cx')}, -{r('Cy')}
        v_cvt_pk_bf16_f32 v{o+5}, -{r('Cz')}, -{r('Cz')}
        v_cvt_pk_bf16_f32 v{o}, {r('S0')}, {r('D')}
        ds_write_b32 v{t}, v{o+1} offset:256
        ds_write_b32 v{t}, v{o+2} offset:512
        ds_write_b32 v{t}, v{o+3} offset:768
        ds_write_b16 v{t+1}, v{o+4} offset:1024
        ds_write_b16_d16_hi v{t+1}, v{o+4} offset:1152
        ds_write_b16 v{t+1}, v{o+5} offset:1280
        ds_write_b32 v{t}, v{o}
        ''')
        for x in self.zero_uz(): A(x)
        return A.l

    def zero_uz(self):
        return [f'v_mov_b32 v{self.acc("Uz",tt)+k}, 0' for tt in range(2) for k in range(8)]

    def node_start(self):
        A = Asm()
        A(f'''
        v_readfirstlane_b32 s{self.S_TK}, v{self.V_TK}
        s_mov_b32 s{self.S_CUR}, s{self.S_NSLOT}
        s_mov_b32 s{self.S_ECUR}, s{self.S_NSLOT}
        s_mov_b32 s{self.S_STEPS}, s{self.S_NSTEPS}
        ''')
        self.setup_next(A, 'B')
        z = self.B0
        A(f'''
        v_mov_b32 v{z+4}, {self.L_TK}
        v_mov_b32 v{z+5}, 1
        s_mov_b64 exec, 1
        ds_add_rtn_u32 v{self.V_TK}, v{z+4}, v{z+5}
        s_mov_b64 exec, -1
        ''')
        return A.l

    def prologue(self):
        A = Asm(); NW, NP = self.NW, self.NP
        L = self.V_LANE
        A(f'''
        aggregate_kernel:
        s_cmp_ge_u32 s2, 256
        s_cbranch_scc1 K2_END
        s_load_dwordx2 s[4:5], s[0:1], 0
        s_load_dwordx2 s[6:7], s[0:1], 16
        s_load_dwordx2 s[90:91], s[0:1], 72
        s_load_dwordx2 s[92:93], s[0:1], 88
        v_lshrrev_b32 v1, 6, v0
        v_and_b32 v{L}, 63, v0
        s_and_b32 s{self.S_B}, s2, 7
        v_readfirstlane_b32 s{self.S_W}, v1
        s_lshl_b32 s{self.S_B}, s{self.S_B}, 5
        s_lshr_b32 s{self.S_T0}, s2, 3
        s_add_u32 s{self.S_B}, s{self.S_B}, s{self.S_T0}
        s_mul_i32 s{self.S_T0}, s{self.S_B}, {NPB}
        s_sub_u32 s{self.S_T0}, {N}, s{self.S_T0}
        s_min_u32 s{self.S_NN}, s{self.S_T0}, {NPB}
        s_waitcnt lgkmcnt(0)
        ''')
        self.st(A, 0)
        srd(A, self.S_X, 4, 5, N * 512)
        srd(A, self.S_EA, 6, 7, E * 32)
        srd(A, self.S_WS, 92, 93, WS_END)
        srd(A, self.S_OUT, 90, 91, N * 512)
        ws = f's[{self.S_WS}:{self.S_WS+3}]'
        A(f'v_lshlrev_b32 v2, 4, v{L}\ns_lshl_b32 s{self.S_T0}, s{self.S_W}, 10')
        for k in range(-(-20 // NW)):
            if (k + 1) * NW > 20:
                A(f's_cmp_ge_u32 s{self.S_W}, {20 - k*NW}\ns_cbranch_scc1 K2_WDONE')
            A(f'''
            s_add_u32 m0, s{self.S_T0}, {self.L_WT + k*NW*1024}
            s_add_u32 s{self.S_T1}, s{self.S_T0}, {WS_WT + k*NW*1024}
            buffer_load_dwordx4 v2, {ws}, s{self.S_T1} offen lds
            ''')
        A('K2_WDONE:')
        A(f'''
        s_mov_b32 s{self.S_BOT}, 0xffff0000
        s_mov_b32 s{self.S_BOT+1}, 0xffff0000
        s_and_b32 s{self.S_T0}, s{self.S_W}, 1
        s_lshl_b32 s{self.S_T1}, s{self.S_T0}, 3
        s_lshl_b32 s{self.S_AMASK}, 0x00ff00ff, s{self.S_T1}
        s_mov_b32 s{self.S_AMASK+1}, s{self.S_AMASK}
        s_mov_b32 s{self.S_EMASK}, 0x03ffffff
        s_mul_i32 s{self.S_XB}, s{self.S_W}, {self.XW}
        s_add_u32 s{self.S_XB}, s{self.S_XB}, {self.L_X}
        s_lshr_b32 s{self.S_AB}, s{self.S_W}, 1
        s_lshl_b32 s{self.S_AB}, s{self.S_AB}, 10
        s_add_u32 s{self.S_AB}, s{self.S_AB}, {self.L_A}
        s_lshl_b32 s{self.S_T0}, s{self.S_T0}, 7
        s_add_u32 s{self.S_T0}, s{self.S_T0}, s{self.S_AB}
        v_lshrrev_b32 v3, 5, v{L}
        v_bfe_u32 v4, v{L}, 4, 1
        v_bfe_u32 v5, v{L}, 2, 2
        v_and_b32 v6, 3, v{L}
        v_mul_u32_u24 v7, {self.XROW}, v5
        v_lshl_add_u32 v7, v3, 9, v7
        v_lshl_add_u32 v7, v4, 5, v7
        v_lshl_add_u32 v7, v6, 3, v7
        v_add_u32 v{self.V_TRB}, s{self.S_XB}, v7
        v_lshrrev_b32 v7, 1, v6
        v_lshl_add_u32 v7, v3, 1, v7
        v_lshlrev_b32 v7, 8, v7
        v_lshl_add_u32 v7, v5, 4, v7
        v_and_b32 v8, 1, v6
        v_lshl_add_u32 v7, v8, 3, v7
        v_add_u32 v{self.V_TRA}, s{self.S_T0}, v7
        v_and_b32 v7, 7, v{L}
        v_lshl_add_u32 v7, v3, 3, v7
        v_lshlrev_b32 v{self.V_EL}, 2, v7
        v_and_b32 v7, 31, v{L}
        v_lshlrev_b32 v{self.V_XL}, 4, v7
        v_lshlrev_b32 v{self.V_EAP}, 4, v4
        v_mul_u32_u24 v7, 0x8000, v4
        v_lshl_or_b32 v{self.V_ODM}, v7, 16, v7
        v_add_u32 v{self.V_WA}, {self.L_WT}, v2
        s_mov_b32 s{self.S_C0}, 0
        s_mov_b32 s{self.S_NC}, {NCH}
        s_mov_b32 s{self.S_P0}, 0
        s_mov_b32 s{self.S_SUB}, 0
        s_mov_b32 s{self.S_FIRST}, 1
        K2_WIN:
        ''')
        TB, AD, RM, EN, RK = 10, 20, 30, 40, 100
        A(f'''
        v_lshrrev_b32 v4, 4, v{L}
        v_lshlrev_b32 v5, 10, v4
        s_lshl_b32 s{self.S_T0}, s{self.S_W}, 12
        s_lshl_b32 s{self.S_T1}, s{self.S_B}, 2
        s_add_u32 s{self.S_T0}, s{self.S_T0}, s{self.S_T1}
        s_add_u32 s{self.S_T0}, s{self.S_T0}, {WS_TAB}
        ''')
        for p in range(NP):
            A(f'buffer_load_dword v{TB+p}, v5, {ws}, s{self.S_T0} offen')
            if p + 1 < NP: A(f's_add_u32 s{self.S_T0}, s{self.S_T0}, {NW*4096}')
        A(f'''
        s_cmp_lg_u32 s{self.S_W}, 0
        s_cbranch_scc1 K2_NOINIT
        v_lshlrev_b32 v6, 2, v{L}
        v_mov_b32 v7, 0
        v_cmp_eq_u32 vcc, {NPB}, v{L}
        v_mov_b32 v8, {2*NW}
        v_mov_b32 v9, 0xffff0000
        v_cndmask_b32 v7, v7, v8, vcc
        v_cmp_ge_u32 vcc, {NPB}, v{L}
        s_mov_b64 exec, vcc
        ds_write_b32 v6, v7 offset:{self.L_CNT}
        s_mov_b64 exec, 0xffff
        v_mov_b32 v8, 0x03ffffe0
        ds_write_b32 v6, v9 offset:{self.L_PAD+64}
        ds_write_b32 v6, v8 offset:{self.L_PAD+128}
        s_mov_b64 exec, -1
        K2_NOINIT:
        s_lshl_b32 s{self.S_T0}, s{self.S_C0}, 10
        s_add_u32 s{self.S_T0}, s{self.S_T0}, s{self.S_T1}
        s_add_u32 s{self.S_T0}, s{self.S_T0}, {WS_TAB}
        s_buffer_load_dword s{self.S_T2}, {ws}, s{self.S_T0}
        s_lshl_b32 s{self.S_T1}, s{self.S_W}, 2
        v_add_u32 v4, s{self.S_T1}, v4
        v_and_b32 v6, 15, v{L}
        s_waitcnt lgkmcnt(0)
        s_barrier
        s_lshr_b32 s{self.S_T2}, s{self.S_T2}, 16
        s_add_u32 s{self.S_T3}, s{self.S_P0}, {CAP}
        s_add_u32 s{self.S_NC0}, s{self.S_C0}, s{self.S_NC}
        s_mov_b32 s{self.S_NP0}, 0
        s_mov_b32 s{self.S_NSUB}, 0
        s_cmp_eq_u32 s{self.S_SUB}, 0
        s_cbranch_scc1 K2_NOSUB
        s_cmp_ge_u32 s{self.S_T3}, s{self.S_T2}
        s_cbranch_scc1 K2_SUBSET
        s_mov_b32 s{self.S_NC0}, s{self.S_C0}
        s_mov_b32 s{self.S_NP0}, s{self.S_T3}
        s_mov_b32 s{self.S_NSUB}, 1
        s_branch K2_SUBSET
        K2_NOSUB:
        s_mov_b32 s{self.S_T3}, 0xffff
        K2_SUBSET:
        s_cmp_ge_u32 s{self.S_NC0}, {NCH}
        s_cselect_b32 s{self.S_LAST}, 1, 0
        v_mov_b32 v9, 0
        ''')
        self.st(A, 1)
        for p in range(NP):
            A(f's_waitcnt vmcnt({NP-1-p})')
            A(f'''
            v_lshrrev_b32 v7, 16, v{TB+p}
            v_subrev_u32 v8, s{self.S_C0}, v4
            v_min_u32 v7, s{self.S_T3}, v7
            v_cmp_gt_u32 vcc, s{self.S_NC}, v8
            v_subrev_u32 v7, s{self.S_P0}, v7
            v_and_b32 v8, 0xffff, v{TB+p}
            v_cndmask_b32 v7, 0, v7, vcc
            v_add3_u32 v8, v8, v6, s{self.S_P0}
            v_sub_u32 v{RM+p}, v7, v6
            v_mul_u32_u24 v8, 12, v8
            v_mul_u32_u24 v7, {CH*12}, v4
            v_cmp_lt_i32 s[{self.S_M+4*p}:{self.S_M+4*p+1}], 0, v{RM+p}
            v_cmp_lt_i32 s[{self.S_M+4*p+2}:{self.S_M+4*p+3}], 16, v{RM+p}
            v_add_u32 v{AD+p}, v7, v8
            v_max_i32 v9, v9, v{RM+p}
            v_add_u32 v4, {4*NW}, v4
            ''')
        A(f's_mov_b32 s{self.S_T0}, {WS_ENT}')
        for sub in range(2):
            for p in range(NP):
                m = self.S_M + 4 * p + 2 * sub
                r = EN + 4 * (sub * NP + p)
                A(f's_mov_b64 exec, s[{m}:{m+1}]\nbuffer_load_dwordx3 v[{r}:{r+2}], v{AD+p}, {ws}, s{self.S_T0} offen offset:{192*sub}')
        A('s_mov_b64 exec, -1\nv_mov_b32 v2, 1')
        self.st(A, 2)
        RK = EN + 4 * 2 * NP
        G = 2 * NP
        for g in range(G):
            sub, p = divmod(g, NP); m = self.S_M + 4 * p + 2 * sub; r = EN + 4 * g
            A(f'''
            s_waitcnt vmcnt({G-1-g})
            s_mov_b64 exec, s[{m}:{m+1}]
            v_lshrrev_b32 v{r+3}, 26, v{r+2}
            v_lshlrev_b32 v3, 2, v{r+3}
            ds_add_rtn_u32 v{RK+g}, v3, v2 offset:{self.L_CNT}
            ''')
        def place(rk, r):
            return f'''
            v_min_u32 v{rk}, {CAP-1}, v{rk}
            v_mul_u32_u24 v{r+3}, {SLOT}, v{r+3}
            v_lshrrev_b32 v3, 4, v{rk}
            v_lshl_add_u32 v{r+3}, v{rk}, 2, v{r+3}
            v_lshl_add_u32 v{r+3}, v3, 7, v{r+3}
            ds_write2_b32 v{r+3}, v{r}, v{r+1} offset0:{self.L_SL//4} offset1:{self.L_SL//4+16}
            ds_write_b32 v{r+3}, v{r+2} offset:{self.L_SL+128}
            '''
        A('s_waitcnt lgkmcnt(0)')
        for g in range(G):
            sub, p = divmod(g, NP); m = self.S_M + 4 * p + 2 * sub
            A(f's_mov_b64 exec, s[{m}:{m+1}]')
            A(place(RK + g, EN + 4 * g))
        self.st(A, 3)
        A(f'''
        s_mov_b64 exec, -1
        s_mov_b32 s{self.S_T1}, 32
        s_add_u32 s{self.S_T0}, s{self.S_T0}, 384
        K2_XLOOP:
        v_cmp_lt_i32 vcc, s{self.S_T1}, v9
        s_cbranch_vccz K2_XDONE
        ''')
        for p in range(NP):
            A(f'''
            v_cmp_lt_i32 vcc, s{self.S_T1}, v{RM+p}
            s_and_saveexec_b64 s[{self.S_M}:{self.S_M+1}], vcc
            s_cbranch_execz K2_XS{p}
            buffer_load_dwordx3 v[{EN}:{EN+2}], v{AD+p}, {ws}, s{self.S_T0} offen
            s_waitcnt vmcnt(0)
            v_lshrrev_b32 v{EN+3}, 26, v{EN+2}
            v_lshlrev_b32 v3, 2, v{EN+3}
            ds_add_rtn_u32 v{RK}, v3, v2 offset:{self.L_CNT}
            s_waitcnt lgkmcnt(0)
            ''')
            A(place(RK, EN))
            A(f'K2_XS{p}:\ns_mov_b64 exec, -1')
        A(f'''
        s_add_u32 s{self.S_T1}, s{self.S_T1}, 16
        s_add_u32 s{self.S_T0}, s{self.S_T0}, 192
        s_branch K2_XLOOP
        K2_XDONE:
        v_lshlrev_b32 v3, 2, v{L}
        v_cmp_gt_u32 vcc, {NPB}, v{L}
        v_mov_b32 v{self.V_CNT}, 0
        s_waitcnt vmcnt(0) lgkmcnt(0)
        s_barrier
        s_mov_b64 exec, vcc
        ds_read_b32 v{self.V_CNT}, v3 offset:{self.L_CNT}
        s_mov_b64 exec, -1
        s_waitcnt lgkmcnt(0)
        v_cmp_lt_u32 vcc, {CAP}, v{self.V_CNT}
        s_cbranch_vccz K2_FITS
        s_barrier
        s_cmp_gt_u32 s{self.S_NC}, 1
        s_cselect_b32 s{self.S_SUB}, 0, 1
        s_add_u32 s{self.S_NC}, s{self.S_NC}, 1
        s_lshr_b32 s{self.S_NC}, s{self.S_NC}, 1
        s_branch K2_WIN
        K2_FITS:
        s_mov_b32 s{self.S_TK}, s{self.S_W}
        ''')
        self.st(A, 4)
        self.setup_next(A, 'A')
        A(f'''
        s_cmp_eq_u32 s{self.S_NSTEPS}, 0
        s_cbranch_scc1 K2_DONE
        v_add_u32 v{self.V_EA}, s{self.S_NSLOT}, v{self.V_EL}
        s_add_u32 s{self.S_T0}, s{self.S_W}, {NW}
        ds_read2_b32 v[{self.E0}:{self.E0+1}], v{self.V_EA} offset0:0 offset1:16
        ds_read_b32 v{self.E0+2}, v{self.V_EA} offset:128
        v_mov_b32 v{self.V_TK}, s{self.S_T0}
        s_waitcnt lgkmcnt(0)
        ''')
        for g in self.dma_items():
            for x in g: A(x)
        for x in self.zero_uz(): A(x)
        return A.l

    def epilogue(self):
        A = Asm(); L = self.V_LANE
        ws = f's[{self.S_WS}:{self.S_WS+3}]'
        FR, AC, BB = 0, 80, 144
        A('K2_DONE:')
        self.st(A, 5)
        A(f'''
        v_lshlrev_b32 v{self.T0}, 4, v{L}
        s_cmp_ge_u32 s{self.S_W}, 4
        s_cbranch_scc1 K2_NOFR
        s_lshr_b32 s{self.S_T0}, s{self.S_W}, 1
        s_mul_i32 s{self.S_T0}, s{self.S_T0}, 20480
        s_add_u32 s{self.S_T0}, s{self.S_T0}, {WS_FRAG}
        s_waitcnt vmcnt(0)
        ''')
        for ks in range(20):
            if ks and ks % 4 == 0: A(f's_add_u32 s{self.S_T0}, s{self.S_T0}, 4096')
            A(f'buffer_load_dwordx4 v[{FR+4*ks}:{FR+4*ks+3}], v{self.T0}, {ws}, s{self.S_T0} offen offset:{(ks%4)*1024}')
        A(f'''
        K2_NOFR:
        s_waitcnt lgkmcnt(0)
        s_barrier
        ''')
        self.st(A, 6)
        if self.dump:
            A(f'''
            s_mul_i32 s{self.S_T1}, s{self.S_B}, 0x12000
            s_add_u32 s{self.S_T1}, s{self.S_T1}, {1<<25}
            s_mov_b32 s{self.S_WS+2}, {1<<27}
            s_lshl_b32 s{self.S_T2}, s{self.S_W}, 10
            v_add_u32 v200, s{self.S_T2}, v{self.T0}
            ''')
            for k in range(9):
                A(f'''
                ds_read_b128 v[204:207], v200 offset:{self.L_SL}
                s_waitcnt lgkmcnt(0)
                buffer_store_dwordx4 v[204:207], v200, {ws}, s{self.S_T1} offen
                s_waitcnt vmcnt(0)
                v_add_u32 v200, {self.NW*1024}, v200
                ''')
            A(f's_mov_b32 s{self.S_WS+2}, {WS_END}')
        A(f'''
        s_cmp_ge_u32 s{self.S_W}, 4
        s_cbranch_scc1 K2_NEXTWIN
        s_and_b32 s{self.S_T0}, s{self.S_W}, 1
        s_lshl_b32 s{self.S_T0}, s{self.S_T0}, 5
        v_and_b32 v{self.T0+1}, 31, v{L}
        v_add_u32 v{self.T0+1}, s{self.S_T0}, v{self.T0+1}
        v_lshrrev_b32 v{self.T0+2}, 5, v{L}
        v_mul_u32_u24 v{self.T0+3}, {SLOT}, v{self.T0+1}
        v_lshl_add_u32 v{self.T0+3}, v{self.T0+2}, 4, v{self.T0+3}
        ''')
        jobs = [(0, ks, ks * 32) for ks in range(8)]
        for j in range(3):
            jobs += [(1 + j, 8 + ks, 256 + 256 * j + ks * 32) for ks in range(8)]
            jobs += [(1 + j, 16 + ks, 1024 + 128 * j + ks * 32) for ks in range(4)]
        NB = 8
        def rd(i): return f'ds_read_b128 v[{BB+4*(i%NB)}:{BB+4*(i%NB)+3}], v{self.T0+3} offset:{self.L_SL+jobs[i][2]}'
        for i in range(NB - 1): A(rd(i))
        A('s_waitcnt vmcnt(0)')
        seen = set()
        for i, (part, ks, off) in enumerate(jobs):
            if i + NB - 1 < len(jobs): A(rd(i + NB - 1)); out = NB - 1
            else: out = len(jobs) - 1 - i
            A(f's_waitcnt lgkmcnt({out})')
            d = AC + 16 * part; b = BB + 4 * (i % NB)
            c = f'v[{d}:{d+15}]' if part in seen else '0'
            seen.add(part)
            A(f'v_mfma_f32_32x32x16_bf16 v[{d}:{d+15}], v[{FR+4*ks}:{FR+4*ks+3}], v[{b}:{b+3}], {c}')
        A(f'''
        s_lshl_b32 s{self.S_T0}, s{self.S_B}, 2
        s_add_u32 s{self.S_T0}, s{self.S_T0}, s{self.S_W}
        s_lshl_b32 s{self.S_T0}, s{self.S_T0}, 14
        s_nop 7
        s_cmp_lg_u32 s{self.S_FIRST}, 0
        s_cbranch_scc1 K2_NOLOADP
        s_mov_b32 s{self.S_T1}, s{self.S_T0}
        ''')
        for k in range(16):
            if k and k % 4 == 0: A(f's_add_u32 s{self.S_T1}, s{self.S_T1}, 4096')
            A(f'buffer_load_dwordx4 v[{4*k}:{4*k+3}], v{self.T0}, {ws}, s{self.S_T1} offen offset:{(k%4)*1024} sc1')
        A('s_waitcnt vmcnt(0)')
        for k in range(64): A(f'v_add_f32 v{AC+k}, v{AC+k}, v{k}')
        A(f'''
        K2_NOLOADP:
        s_cmp_lg_u32 s{self.S_LAST}, 0
        s_cbranch_scc1 K2_FINAL
        ''')
        for k in range(16):
            if k and k % 4 == 0: A(f's_add_u32 s{self.S_T0}, s{self.S_T0}, 4096')
            A(f'buffer_store_dwordx4 v[{AC+4*k}:{AC+4*k+3}], v{self.T0}, {ws}, s{self.S_T0} offen offset:{(k%4)*1024} sc1')
        A(f'''
        s_waitcnt vmcnt(0)
        s_branch K2_NEXTWIN
        K2_FINAL:
        s_mul_i32 s{self.S_T0}, s{self.S_B}, {NPB*512}
        s_lshr_b32 s{self.S_T1}, s{self.S_W}, 1
        s_lshl_b32 s{self.S_T1}, s{self.S_T1}, 6
        s_add_u32 s{self.S_T0}, s{self.S_T0}, s{self.S_T1}
        v_lshlrev_b32 v{self.T0+3}, 9, v{self.T0+1}
        v_lshl_add_u32 v{self.T0+3}, v{self.T0+2}, 5, v{self.T0+3}
        v_cmp_gt_u32 vcc, s{self.S_NN}, v{self.T0+1}
        ''')
        for k in range(16): A(f'v_mul_f32 v{k}, 0xbfb8aa3b, v{AC+k}')
        for k in range(16): A(f'v_exp_f32 v{k}, v{k}')
        for k in range(16): A(f'v_add_f32 v{k}, 1.0, v{k}')
        for k in range(16): A(f'v_rcp_f32 v{k}, v{k}')
        for k in range(8): A(f'v_cvt_pk_bf16_f32 v{16+k}, v{AC+2*k}, v{AC+2*k+1}')
        for j in range(3):
            for k in range(16): A(f'v_mul_f32 v{AC+16+16*j+k}, v{AC+16+16*j+k}, v{k}')
            for k in range(8): A(f'v_cvt_pk_bf16_f32 v{24+8*j+k}, v{AC+16+16*j+2*k}, v{AC+16+16*j+2*k+1}')
        A('s_mov_b64 exec, vcc')
        for part in range(4):
            for hf in range(2):
                r = 16 + 8 * part + 4 * hf
                A(f'buffer_store_dwordx4 v[{r}:{r+3}], v{self.T0+3}, s[{self.S_OUT}:{self.S_OUT+3}], s{self.S_T0} offen offset:{128*part+16*hf}')
        A('s_mov_b64 exec, -1\nK2_NEXTWIN:')
        if self.stamp:
            A('s_waitcnt vmcnt(0)')
            self.st(A, 7)
            A(f'''
            s_mov_b32 s{self.S_WS+2}, {1<<27}
            s_lshl_b32 s{self.S_T0}, s2, 3
            s_add_u32 s{self.S_T0}, s{self.S_T0}, s{self.S_W}
            s_lshl_b32 s{self.S_T0}, s{self.S_T0}, 5
            s_add_u32 s{self.S_T0}, s{self.S_T0}, {1<<26}
            v_lshlrev_b32 v254, 2, v{L}
            s_mov_b64 exec, 0xff
            buffer_store_dword v255, v254, {ws}, s{self.S_T0} offen
            s_mov_b64 exec, -1
            s_mov_b32 s{self.S_WS+2}, {WS_END}
            ''')
        A(f'''
        s_cmp_lg_u32 s{self.S_LAST}, 0
        s_cbranch_scc1 K2_END
        s_mov_b32 s{self.S_C0}, s{self.S_NC0}
        s_mov_b32 s{self.S_P0}, s{self.S_NP0}
        s_mov_b32 s{self.S_SUB}, s{self.S_NSUB}
        s_mov_b32 s{self.S_FIRST}, 0
        s_waitcnt vmcnt(0) lgkmcnt(0)
        s_barrier
        s_branch K2_WIN
        K2_END:
        s_endpgm
        ''')
        return A.l

    def gen(self):
        pro, ns, s1, s2, con, epi = self.prologue(), self.node_start(), self.step(True), self.step(False), self.contract(), self.epilogue()
        A = Asm()
        A.ext(pro); A('K2_NODE:'); A.ext(ns); A.ext(s1)
        A('s_cbranch_scc0 K2_CON\nK2_REST:'); A.ext(s2); A('s_cbranch_scc1 K2_REST\nK2_CON:'); A.ext(con)
        A(f's_cmp_lg_u32 s{self.S_NSTEPS}, 0\ns_cbranch_scc1 K2_NODE')
        A.ext(epi)
        br = ['s_nop 0']
        bad = check(pro + ns + s1 + br + s2 + br + s2 + br + con + br + ns + s1 + br + con + br + epi, 'k2')
        return A.l, bad


def build(NW=8, eflag='nt', xflag='', dump=0, stamp=0, probe=''):
    k1 = gen_k1()
    bad = check(k1, 'k1')
    k2o = K2(NW, eflag, xflag, dump, stamp)
    k2, b2 = k2o.gen()
    assert bad + b2 == 0, 'hazards'
    hdr = f'''; Equiformer tensor-product message passing, two launches.
; @launch kernel=sort_edges_kernel grid=(256,1,1) block=(832,1,1) lds={K1_LDS}
; @launch kernel=aggregate_kernel grid=(256,1,1) block=({NW*64},1,1) lds={k2o.LDS}
.amdgcn_target "amdgcn-amd-amdhsa--gfx950"
.text
'''
    s = hdr
    extra = ''
    if probe:
        pre = {'empty': '; @launch kernel=probe_kernel grid=(256,1,1) block=(64,1,1) lds=0\n',
               'empty2': '; @launch kernel=probe_kernel grid=(256,1,1) block=(64,1,1) lds=0\n' * 4,
               'ea': '; @launch kernel=probe_kernel grid=(250,1,1) block=(1024,1,1) lds=0\n',
               'ea2': '; @launch kernel=probe_kernel grid=(250,1,1) block=(1024,1,1) lds=0\n' * 2}[probe]
        s = s.replace('; @launch kernel=sort', pre + '; @launch kernel=sort')
        A = Asm()
        A('probe_kernel:')
        if probe.startswith('ea'):
            A('s_cmp_ge_u32 s2, 250\ns_cbranch_scc1 P_END\ns_load_dwordx2 s[4:5], s[0:1], 16\nv_lshlrev_b32 v1, 4, v0\ns_waitcnt lgkmcnt(0)')
            srd(A, 8, 4, 5, E * 32)
            A('s_mul_i32 s3, s2, 102400')
            for k in range(7): A(f'buffer_load_dwordx4 v[{4+4*k}:{7+4*k}], v1, s[8:11], s3 offen\ns_add_u32 s3, s3, 16384')
            A('s_waitcnt vmcnt(0)')
        A('P_END:\ns_endpgm')
        s += '.globl probe_kernel\n.p2align 8\n.type probe_kernel,@function\n' + '\n'.join(A.l) + '\n'
        extra = desc('probe_kernel', 40, 32)
    for name, body in (('sort_edges_kernel', k1), ('aggregate_kernel', k2)):
        s += f'.globl {name}\n.p2align 8\n.type {name},@function\n' + '\n'.join(body) + '\n'
    s += desc('sort_edges_kernel', 48, 64) + desc('aggregate_kernel', 256, 102) + extra
    return s


if __name__ == '__main__':
    out = sys.argv[1] if len(sys.argv) > 1 else 'gather_scatter__tensor_product_equiv_equiformer__graph.s'
    kw = dict(a.split('=') for a in sys.argv[2:])
    for k in kw:
        if kw[k].isdigit(): kw[k] = int(kw[k])
    open(out, 'w').write(build(**kw))
    print('wrote', out)
```

```python
import sys
from hazard import check

N, E = 12500, 800000
NPB = 49
NCH, CH = 250, 3200
CAP = 112
SLOT = 1424
WS_PART = 0
WS_ENT = 16777216
WS_WT = WS_ENT + NCH * CH * 12
WS_FRAG = WS_WT + 20480
WS_TAB = WS_FRAG + 40960
WS_END = WS_TAB + NCH * 1024
DPPM = 'row_mask:0xf bank_mask:0xf'


class Asm:
    def __init__(self): self.l = []
    def __call__(self, s):
        for x in s.strip('\n').split('\n'):
            self.l.append(x.strip() if x.strip().endswith(':') else '    ' + x.strip())
    def ext(self, lines): self.l += lines


def srd(A, d, lo, hi, size):
    A(f's_mov_b32 s{d}, s{lo}\ns_and_b32 s{d+1}, s{hi}, 0xffff\ns_mov_b32 s{d+2}, {size}\ns_mov_b32 s{d+3}, 0x20000')


def desc(name, vgpr, sgpr):
    return f'''.section .rodata,"a"
.p2align 6
.amdhsa_kernel {name}
  .amdhsa_next_free_vgpr {vgpr}
  .amdhsa_next_free_sgpr {sgpr}
  .amdhsa_accum_offset {(vgpr + 3) // 4 * 4}
  .amdhsa_group_segment_fixed_size 0
  .amdhsa_kernarg_size 96
  .amdhsa_user_sgpr_count 2
  .amdhsa_user_sgpr_kernarg_segment_ptr 1
  .amdhsa_system_sgpr_workgroup_id_x 1
.end_amdhsa_kernel
'''


K1_CNT, K1_OFF, K1_LDS = 38400, 39424, 40448


def dbg_atomic(A, sreg, slot, inv, back=0):
    A(f'''
    s_load_dwordx2 s[96:97], s[0:1], 80
    s_waitcnt lgkmcnt(0)
    s_sub_u32 s96, s96, {back}
    s_subb_u32 s97, s97, 0
    s_and_b32 s97, s97, 0xffff
    s_mov_b32 s98, 256
    s_mov_b32 s99, 0x20000
    ''')
    A(f's_not_b32 s95, s{sreg}' if inv else f's_mov_b32 s95, s{sreg}')
    A(f'''
    s_mov_b64 exec, 1
    v_mov_b32 v1, s95
    v_mov_b32 v2, {4*slot}
    buffer_atomic_umax v1, v2, s[96:99], 0 offen
    s_waitcnt vmcnt(0)
    s_mov_b64 exec, -1
    ''')


def gen_k1(dbgst=0):
    A = Asm()
    A('''
    sort_edges_kernel:
    s_cmp_ge_u32 s2, 256
    s_cbranch_scc1 K1_END
    s_load_dwordx2 s[4:5], s[0:1], 8
    s_load_dwordx4 s[8:11], s[0:1], 24
    s_load_dwordx4 s[32:35], s[0:1], 40
    s_load_dwordx2 s[36:37], s[0:1], 56
    s_load_dwordx2 s[6:7], s[0:1], 88
    v_lshlrev_b32 v1, 4, v0
    v_mul_u32_u24 v2, 24, v0
    v_lshrrev_b32 v3, 6, v0
    v_and_b32 v40, 63, v0
    v_readfirstlane_b32 s38, v3
    s_waitcnt lgkmcnt(0)
    ''')
    if dbgst: A('s_memrealtime s[90:91]\ns_waitcnt lgkmcnt(0)')
    srd(A, 12, 4, 5, E * 6)
    srd(A, 16, 8, 9, E * 4)
    srd(A, 20, 10, 11, E * 4)
    srd(A, 24, 6, 7, WS_END)
    A(f'''
    s_cmp_ge_u32 s2, {NCH}
    s_cbranch_scc1 K1_PREP
    s_mul_i32 s28, s2, {CH * 4}
    s_mul_i32 s29, s2, {CH * 6}
    v_cmp_gt_u32 vcc, {CH // 4}, v0
    s_mov_b64 s[30:31], vcc
    s_mov_b64 exec, vcc
    buffer_load_dwordx4 v[4:7], v1, s[20:23], s28 offen
    buffer_load_dwordx4 v[8:11], v1, s[16:19], s28 offen
    buffer_load_dwordx4 v[12:15], v2, s[12:15], s29 offen
    buffer_load_dwordx2 v[16:17], v2, s[12:15], s29 offen offset:16
    s_mov_b64 exec, -1
    v_cmp_gt_u32 vcc, 0x100, v0
    v_lshlrev_b32 v18, 2, v0
    v_mov_b32 v19, 0
    s_mov_b64 exec, vcc
    ds_write_b32 v18, v19 offset:{K1_CNT}
    s_mov_b64 exec, -1
    s_mul_i32 s39, s2, {CH * 32}
    v_lshl_add_u32 v32, v0, 7, s39
    v_mov_b32 v41, 1
    s_waitcnt lgkmcnt(0)
    s_barrier
    s_mov_b64 exec, s[30:31]
    s_waitcnt vmcnt(3)
    ''')
    for i in range(4): A(f'v_mul_u32_u24 v{20+i}, 21400, v{4+i}')
    for i in range(4): A(f'v_lshrrev_b32 v{20+i}, 20, v{20+i}')
    for i in range(4): A(f'v_mul_u32_u24 v{28+i}, {NPB}, v{20+i}')
    for i in range(4): A(f'v_lshlrev_b32 v{20+i}, 2, v{20+i}')
    for i in range(4): A(f'ds_add_rtn_u32 v{24+i}, v{20+i}, v41 offset:{K1_CNT}')
    for i in range(4): A(f'v_sub_u32 v{28+i}, v{4+i}, v{28+i}')
    for i in range(1, 4): A(f'v_add_u32 v{32+i}, {32*i}, v32')
    for i in range(4): A(f'v_lshl_or_b32 v{28+i}, v{28+i}, 26, v{32+i}')
    A('''
    s_mov_b32 s40, 0x05040100
    s_mov_b32 s41, 0x05040302
    s_waitcnt vmcnt(0)
    v_alignbit_b32 v33, v14, v13, 16
    v_alignbit_b32 v35, v17, v16, 16
    v_perm_b32 v36, v8, v13, s40
    v_perm_b32 v37, v9, v14, s41
    v_perm_b32 v38, v10, v16, s40
    v_perm_b32 v39, v11, v17, s41
    v_mov_b32 v32, v12
    v_mov_b32 v34, v15
    v_xor_b32 v36, 0x8000, v36
    v_xor_b32 v37, 0x8000, v37
    v_xor_b32 v38, 0x8000, v38
    v_xor_b32 v39, 0x8000, v39
    s_mov_b64 exec, -1
    v_lshlrev_b32 v42, 4, v40
    s_waitcnt lgkmcnt(0)
    s_barrier
    ''')
    A(f'''
    ds_read_b128 v[4:7], v42 offset:{K1_CNT}
    s_waitcnt lgkmcnt(0)
    v_add_u32 v8, v4, v5
    v_add_u32 v9, v8, v6
    v_add_u32 v10, v9, v7
    v_mov_b32 v11, v10
    s_nop 1
    ''')
    for sh in ('row_shr:1', 'row_shr:2', 'row_shr:4', 'row_shr:8'):
        A(f'v_add_u32_dpp v11, v11, v11 {sh} {DPPM}\ns_nop 1')
    A('v_add_u32_dpp v11, v11, v11 row_bcast:15 row_mask:0xa bank_mask:0xf\ns_nop 1')
    A('v_add_u32_dpp v11, v11, v11 row_bcast:31 row_mask:0xc bank_mask:0xf')
    A(f'''
    v_sub_u32 v12, v11, v10
    v_add_u32 v13, v12, v4
    v_add_u32 v14, v12, v8
    v_add_u32 v15, v12, v9
    ds_write_b128 v42, v[12:15] offset:{K1_OFF}
    s_cmp_lg_u32 s38, 0
    s_cbranch_scc1 K1_NOTAB
    v_lshl_or_b32 v44, v4, 16, v12
    v_lshl_or_b32 v45, v5, 16, v13
    v_lshl_or_b32 v46, v6, 16, v14
    v_lshl_or_b32 v47, v7, 16, v15
    s_lshl_b32 s42, s2, 10
    s_add_u32 s42, s42, {WS_TAB}
    buffer_store_dwordx4 v[44:47], v42, s[24:27], s42 offen
    K1_NOTAB:
    s_mov_b64 exec, s[30:31]
    ''')
    for i in range(4): A(f'ds_read_b32 v{4+i}, v{20+i} offset:{K1_OFF}')
    for i in range(4):
        A(f's_waitcnt lgkmcnt({3-i})\nv_add_u32 v{4+i}, v{4+i}, v{24+i}\nv_mul_u32_u24 v{4+i}, 12, v{4+i}')
    for i in range(4):
        A(f'ds_write2_b32 v{4+i}, v{32+i}, v{36+i} offset0:0 offset1:1\nds_write_b32 v{4+i}, v{28+i} offset:8')
    A(f'''
    s_mul_i32 s42, s2, {CH * 12}
    s_add_u32 s42, s42, {WS_ENT}
    s_add_u32 s43, s42, 12800
    s_add_u32 s44, s42, 25600
    s_waitcnt lgkmcnt(0)
    s_barrier
    ds_read_b128 v[4:7], v1
    ds_read_b128 v[8:11], v1 offset:12800
    ds_read_b128 v[12:15], v1 offset:25600
    s_waitcnt lgkmcnt(2)
    buffer_store_dwordx4 v[4:7], v1, s[24:27], s42 offen
    s_waitcnt lgkmcnt(1)
    buffer_store_dwordx4 v[8:11], v1, s[24:27], s43 offen
    s_waitcnt lgkmcnt(0)
    buffer_store_dwordx4 v[12:15], v1, s[24:27], s44 offen
    ''')
    if dbgst:
        A('s_waitcnt vmcnt(0)\ns_memrealtime s[92:93]\ns_waitcnt lgkmcnt(0)')
        dbg_atomic(A, 90, 0, 1); dbg_atomic(A, 92, 1, 0); dbg_atomic(A, 90, 2, 0)
    A(f'''
    s_endpgm
    K1_PREP:
    s_cmp_lg_u32 s2, {NCH}
    s_cbranch_scc1 K1_FRAG
    ''')
    srd(A, 12, 32, 33, 16 * 320 * 2)
    A('s_cmp_ge_u32 s38, 10\ns_cbranch_scc1 K1_END')
    for ps in range(2):
        A(f'''
        s_add_u32 s39, s38, {10 * ps}
        s_and_b32 s40, s39, 1
        s_lshr_b32 s41, s39, 1
        s_mul_i32 s40, s40, {8 * 640}
        s_lshl_b32 s41, s41, 6
        s_add_u32 s40, s40, s41
        v_lshrrev_b32 v4, 5, v40
        v_mul_u32_u24 v4, {4 * 640}, v4
        v_and_b32 v5, 31, v40
        v_lshl_add_u32 v4, v5, 1, v4
        v_mov_b32 v8, 0
        v_mov_b32 v9, 0
        v_mov_b32 v10, 0
        v_mov_b32 v11, 0
        ''')
        for r in range(4): A(f'buffer_load_short_d16_hi v{8+r}, v4, s[12:15], s40 offen offset:{640*r}')
        A(f'''
        s_lshl_b32 s41, s39, 10
        s_add_u32 s41, s41, {WS_WT}
        v_lshlrev_b32 v6, 4, v40
        s_waitcnt vmcnt(0)
        buffer_store_dwordx4 v[8:11], v6, s[24:27], s41 offen
        s_waitcnt vmcnt(0)
        ''')
    A('s_endpgm\nK1_FRAG:')
    srd(A, 12, 34, 35, 128 * 64 * 2)
    srd(A, 16, 36, 37, 192 * 64 * 2)
    A(f'''
    s_cmp_ge_u32 s38, 8
    s_cbranch_scc1 K1_END
    s_sub_u32 s39, s2, {NCH + 1}
    s_lshl_b32 s39, s39, 3
    s_add_u32 s39, s39, s38
    s_cmp_ge_u32 s39, 20
    s_cselect_b32 s40, 20, 0
    s_cselect_b32 s41, 64, 0
    s_sub_u32 s40, s39, s40
    v_bfe_u32 v4, v40, 2, 1
    v_bfe_u32 v5, v40, 3, 2
    v_and_b32 v6, 3, v40
    v_lshlrev_b32 v4, 4, v4
    v_lshl_add_u32 v4, v5, 2, v4
    v_add_u32 v4, v4, v6
    v_lshl_add_u32 v4, v4, 1, s41
    v_lshrrev_b32 v5, 5, v40
    s_lshl_b32 s45, s39, 10
    s_add_u32 s45, s45, {WS_FRAG}
    v_lshlrev_b32 v7, 4, v40
    s_cmp_ge_u32 s40, 16
    s_cbranch_scc1 K1_FRAGC
    v_lshl_add_u32 v4, v5, 9, v4
    s_and_b32 s43, s40, 7
    s_lshl_b32 s43, s43, 10
    s_add_u32 s44, s43, 8192
    s_cmp_ge_u32 s40, 8
    s_cbranch_scc1 K1_FRAGB
    ''')
    for n in range(4):
        A(f'buffer_load_ushort v{8+n}, v4, s[12:15], s43 offen offset:{128*n}')
        A(f'buffer_load_ushort v{12+n}, v4, s[12:15], s44 offen offset:{128*n}')
    A('s_branch K1_FRAGST\nK1_FRAGB:')
    for n in range(4):
        A(f'buffer_load_ushort v{8+n}, v4, s[16:19], s43 offen offset:{128*n}')
        A(f'buffer_load_ushort v{12+n}, v4, s[16:19], s44 offen offset:{128*n}')
    A('''
    s_branch K1_FRAGST
    K1_FRAGC:
    v_lshl_add_u32 v4, v5, 10, v4
    s_sub_u32 s43, s40, 16
    s_lshl_b32 s43, s43, 11
    s_add_u32 s43, s43, 16384
    ''')
    for n in range(4):
        A(f'buffer_load_ushort v{8+n}, v4, s[16:19], s43 offen offset:{256*n}')
        A(f'buffer_load_ushort v{12+n}, v4, s[16:19], s43 offen offset:{256*n+128}')
    A('''
    K1_FRAGST:
    s_waitcnt vmcnt(0)
    v_lshl_or_b32 v8, v12, 16, v8
    v_lshl_or_b32 v9, v13, 16, v9
    v_lshl_or_b32 v10, v14, 16, v10
    v_lshl_or_b32 v11, v15, 16, v11
    buffer_store_dwordx4 v[8:11], v7, s[24:27], s45 offen
    K1_END:
    s_endpgm
    ''')
    return A.l


class K2:
    def __init__(self, NW=8, eflag='nt', xflag='', dump=0, stamp=0):
        self.stamp = stamp; self.dump = dump; self.NW = NW; self.eflag = eflag; self.xflag = xflag
        self.XROW = 1088
        self.XW = 7 * self.XROW + 1024
        self.L_CNT = 0
        self.L_TK = NPB * 4
        self.L_PAD = self.L_TK + 4 - 64
        self.L_SL = 336
        self.L_WT = self.L_SL + NPB * SLOT - 16
        self.L_X = self.L_WT + 20480
        self.L_A = self.L_X + NW * self.XW
        self.LDS = self.L_A + ((NW + 1) // 2) * 1024
        assert self.LDS <= 163840, self.LDS
        self.NP = -(-NCH // (4 * NW))

    blk = dict(S0=0, Vz=8, Vx=16, Vy=24, Ux=32, Cy=40, Cx=48, Uy=56, Uz=64, D=72, Cz=80)
    B0 = 176
    OA, OB, OC = 208, 212, 216
    AU = 220
    T0 = 228
    MA, MB, MC, ME = 232, 233, 234, 235
    E0 = 236
    V_TRB, V_TRA, V_EL, V_XL, V_EAP, V_ODM, V_WA, V_CNT, V_TK, V_EA, V_LANE, V_SRC = range(239, 251)
    S_X, S_EA, S_WS, S_OUT = 8, 12, 16, 20
    S_W, S_B, S_NN = 3, 24, 25
    S_C0, S_NC, S_P0, S_SUB, S_FIRST, S_LAST, S_NC0, S_NP0, S_NSUB = range(26, 35)
    S_CUR, S_STEPS, S_ECUR, S_EPTR, S_NSLOT, S_NSTEPS, S_TK, S_XB, S_AB = range(35, 44)
    S_T0, S_T1, S_T2, S_T3 = 44, 45, 46, 47
    S_BOT, S_AMASK = 48, 50
    S_EMASK = 52
    S_M = 54

    def st(self, A, k):
        if self.stamp:
            A(f's_memrealtime s[100:101]\ns_waitcnt lgkmcnt(0)\nv_writelane_b32 v255, s100, {k}')

    def acc(self, name, t): return t * 88 + self.blk[name]
    def Breg(self, m, t): return self.B0 + (m * 2 + t) * 4

    def setup_next(self, A, tag):
        t0, t1, t2 = self.T0, self.T0 + 1, self.T0 + 2
        z = self.B0
        A(f'''
        s_mov_b32 s{self.S_NSLOT}, {self.L_PAD}
        s_mov_b32 s{self.S_NSTEPS}, 0
        v_mov_b32 v{z}, 0
        v_mov_b32 v{z+1}, 0xffff0000
        s_cmp_lt_u32 s{self.S_TK}, s{self.S_NN}
        s_cbranch_scc0 SN_{tag}
        v_readlane_b32 s{self.S_T0}, v{self.V_CNT}, s{self.S_TK}
        s_mul_i32 s{self.S_NSLOT}, s{self.S_TK}, {SLOT}
        v_mov_b32 v{z+2}, 0x03ffffe0
        s_add_u32 s{self.S_NSLOT}, s{self.S_NSLOT}, {self.L_SL}
        s_add_u32 s{self.S_T1}, s{self.S_T0}, 15
        s_lshr_b32 s{self.S_T1}, s{self.S_T1}, 4
        s_max_u32 s{self.S_NSTEPS}, s{self.S_T1}, 1
        s_lshl_b32 s{self.S_T1}, s{self.S_NSTEPS}, 4
        v_add_u32 v{t0}, s{self.S_T0}, v{self.V_LANE}
        v_cmp_gt_u32 vcc, s{self.S_T1}, v{t0}
        v_lshrrev_b32 v{t1}, 4, v{t0}
        v_lshl_add_u32 v{t2}, v{t0}, 2, s{self.S_NSLOT}
        v_lshl_add_u32 v{t2}, v{t1}, 7, v{t2}
        s_mov_b64 exec, vcc
        ds_write2_b32 v{t2}, v{z}, v{z+1} offset0:0 offset1:16
        ds_write_b32 v{t2}, v{z+2} offset:128
        s_mov_b64 exec, -1
        SN_{tag}:
        ''')

    def dma_items(self):
        t = self.T0
        it = []
        it.append([f'v_lshlrev_b32_sdwa v{self.V_SRC}, 9, v{self.E0+1} dst_sel:DWORD dst_unused:UNUSED_PAD src0_sel:DWORD src1_sel:WORD_1',
                   f'v_and_or_b32 v{self.V_EA}, v{self.E0+2}, s{self.S_EMASK}, v{self.V_EAP}',
                   f's_mov_b32 m0, s{self.S_AB}',
                   f's_mov_b64 exec, s[{self.S_AMASK}:{self.S_AMASK+1}]',
                   f'buffer_load_dwordx4 v{self.V_EA}, s[{self.S_EA}:{self.S_EA+3}], 0 offen {self.eflag} lds',
                   's_mov_b64 exec, -1'])
        for j in range(8):
            it.append([f's_add_u32 m0, s{self.S_XB}, {j*self.XROW}',
                       f'v_add_u32_dpp v{self.V_EA}, v{self.V_SRC}, v{self.V_XL} row_newbcast:{j} {DPPM}',
                       f'buffer_load_dwordx4 v{self.V_EA}, s[{self.S_X}:{self.S_X+3}], 0 offen {self.xflag} lds'])
        return it

    def build_op(self, dst, m):
        t = self.T0
        o = []
        for n in range(4):
            a, b = t + (2 * n) % 4, t + (2 * n) % 4 + 1
            o.append(f'v_mul_f32_dpp v{a}, v{m}, v{self.AU+2*n} row_newbcast:{2*n} {DPPM}')
            o.append(f'v_mul_f32_dpp v{b}, v{m}, v{self.AU+2*n+1} row_newbcast:{2*n+1} {DPPM}')
            o.append(f'v_cvt_pk_bf16_f32 v{dst+n}, v{a}, v{b}')
        return o

    def step(self, first):
        A = Asm()
        t = self.T0; e = self.E0
        bot = f's[{self.S_BOT}:{self.S_BOT+1}]'
        A(f'''
        v_lshlrev_b32 v{t}, 16, v{e}
        v_and_b32 v{t+1}, 0xffff0000, v{e}
        v_lshlrev_b32 v{t+2}, 16, v{e+1}
        s_add_u32 s{self.S_ECUR}, s{self.S_ECUR}, 192
        s_cmp_eq_u32 s{self.S_STEPS}, 1
        s_cselect_b32 s{self.S_EPTR}, s{self.S_NSLOT}, s{self.S_ECUR}
        v_cndmask_b32_e64 v{self.MA}, 1.0, v{t+2}, {bot}
        v_cndmask_b32_e64 v{self.MB}, v{t}, v{t+1}, {bot}
        v_cndmask_b32_e64 v{self.MC}, v{t+2}, 1.0, {bot}
        v_cndmask_b32_e64 v{self.ME}, v{t+1}, -v{t}, {bot}
        v_add_u32 v{self.V_EA}, s{self.S_EPTR}, v{self.V_EL}
        s_waitcnt vmcnt(0)
        ds_read_b64_tr_b16 v[{self.OC}:{self.OC+1}], v{self.V_TRA}
        ds_read_b64_tr_b16 v[{self.OC+2}:{self.OC+3}], v{self.V_TRA} offset:64
        ds_read2_b32 v[{e}:{e+1}], v{self.V_EA} offset0:0 offset1:16
        ds_read_b32 v{e+2}, v{self.V_EA} offset:128
        ''')
        rd = []
        for m in range(4):
            for tt in range(2):
                for q in range(2):
                    b = self.Breg(m, tt) + 2 * q
                    rd.append(f'ds_read_b64_tr_b16 v[{b}:{b+1}], v{self.V_TRB} offset:{q*4*self.XROW + m*128 + tt*64}')
        for r in rd[:8]: A(r)
        A('s_waitcnt lgkmcnt(10)')
        up = []
        for n in range(4):
            up.append(f'v_lshlrev_b32 v{self.AU+2*n}, 16, v{self.OC+n}')
            up.append(f'v_and_b32 v{self.AU+2*n+1}, 0xffff0000, v{self.OC+n}')
        for k in range(8): A(up[k]); A(rd[8 + k])
        for x in self.build_op(self.OA, self.MA): A(x)
        A('s_waitcnt lgkmcnt(0)')

        def mf(win, tt, op, m, zero):
            d = self.acc(win, tt); b = self.Breg(m, tt)
            c = '0' if (first and zero) else f'v[{d}:{d+15}]'
            return f'v_mfma_f32_32x32x16_bf16 v[{d}:{d+15}], v[{op}:{op+3}], v[{b}:{b+3}], {c}'
        seq = [('S0', self.OA, 0, 1), ('Ux', self.OA, 1, 1), ('Vx', self.OB, 0, 1), ('D', self.OB, 1, 1),
               ('Cx', self.OC, 2, 1), ('Uz', self.OA, 3, 0), ('Cy', self.OB, 3, 0), ('D', self.OC, 2, 0)]
        M = [mf(w, tt, op, m, z) for (w, op, m, z) in seq for tt in range(2)]
        dma = self.dma_items()
        ob = self.build_op(self.OB, self.MB)
        oc = self.build_op(self.OC, self.MC)
        oe = self.build_op(self.OC, self.ME)
        od = [f'v_xor_b32 v{self.OA+n}, v{self.V_ODM}, v{self.OA+n}' for n in range(4)]
        fill = [[] for _ in range(16)]
        fill[0] = dma[0] + dma[1] + ob[0:3]
        fill[1] = dma[2] + ob[3:6] + dma[3]
        fill[2] = dma[4] + ob[6:9] + dma[5]
        fill[3] = ob[9:12] + dma[6] + dma[7] + dma[8]
        fill[4] = oc[0:3] + od[0:2]
        fill[5] = oc[3:6] + od[2:4]
        fill[6] = oc[6:9]
        fill[7] = oc[9:12] + ['s_nop 1']
        fill[8] = ['s_nop 1']
        fill[9] = oe[0:3]
        fill[10] = oe[3:6]
        fill[11] = oe[6:9]
        fill[12] = oe[9:12]
        fill[13] = ['s_nop 0']
        A('s_nop 0')
        for k in range(16):
            A(M[k])
            for x in fill[k]: A(x)
        A(f's_sub_u32 s{self.S_STEPS}, s{self.S_STEPS}, 1\ns_cmp_lg_u32 s{self.S_STEPS}, 0')
        return A.l

    def contract(self):
        A = Asm()
        groups = [(0, ['S0']), (2, ['Vx', 'Vy', 'Vz']), (3, ['Ux', 'Uy', 'Uz']), (4, ['Cx', 'Cy', 'Cz']), (1, ['D'])]
        bufs = [self.B0, self.B0 + 16]
        def rd(g):
            p = groups[g][0]; b = bufs[g % 2]
            o = []
            for tt in range(2):
                for q in range(2):
                    r = b + tt * 8 + q * 4
                    o.append(f'ds_read_b128 v[{r}:{r+3}], v{self.V_WA} offset:{((p*2+tt)*2+q)*1024}')
            return o
        for x in rd(0) + rd(1): A(x)
        for g, (p, names) in enumerate(groups):
            A(f's_waitcnt lgkmcnt({4 if g < 4 else 0})')
            b = bufs[g % 2]
            for rho in range(8):
                for tt in range(2):
                    for nm in names:
                        a = self.acc(nm, tt); w = b + tt * 8 + rho
                        A(f'v_mul_f32 v{a}, v{a}, v{w}' if rho == 0 else f'v_fmac_f32 v{a}, v{a+rho}, v{w}')
            if g + 2 < 5:
                for x in rd(g + 2): A(x)
        t = self.T0
        A(f'v_lshl_add_u32 v{t}, v{self.V_LANE}, 2, s{self.S_CUR}\nv_lshl_add_u32 v{t+1}, v{self.V_LANE}, 1, s{self.S_CUR}')
        order = ['S0', 'Vx', 'Vy', 'Vz', 'Ux', 'Uy', 'Uz', 'Cx', 'Cy', 'Cz', 'D']
        for nm in order: A(f'v_permlane32_swap_b32 v{self.acc(nm,0)}, v{self.acc(nm,1)}')
        for nm in order: A(f'v_add_f32 v{self.acc(nm,0)}, v{self.acc(nm,0)}, v{self.acc(nm,1)}')
        r = lambda nm: f'v{self.acc(nm,0)}'
        o = self.OA
        A(f'''
        v_cvt_pk_bf16_f32 v{o+1}, {r('Vx')}, {r('Ux')}
        v_cvt_pk_bf16_f32 v{o+2}, {r('Vy')}, {r('Uy')}
        v_cvt_pk_bf16_f32 v{o+3}, -{r('Vz')}, {r('Uz')}
        v_cvt_pk_bf16_f32 v{o+4}, {r('Cx')}, -{r('Cy')}
        v_cvt_pk_bf16_f32 v{o+5}, -{r('Cz')}, -{r('Cz')}
        v_cvt_pk_bf16_f32 v{o}, {r('S0')}, {r('D')}
        ds_write_b32 v{t}, v{o+1} offset:256
        ds_write_b32 v{t}, v{o+2} offset:512
        ds_write_b32 v{t}, v{o+3} offset:768
        ds_write_b16 v{t+1}, v{o+4} offset:1024
        ds_write_b16_d16_hi v{t+1}, v{o+4} offset:1152
        ds_write_b16 v{t+1}, v{o+5} offset:1280
        ds_write_b32 v{t}, v{o}
        ''')
        for x in self.zero_uz(): A(x)
        return A.l

    def zero_uz(self):
        return [f'v_mov_b32 v{self.acc("Uz",tt)+k}, 0' for tt in range(2) for k in range(8)]

    def node_start(self):
        A = Asm()
        A(f'''
        v_readfirstlane_b32 s{self.S_TK}, v{self.V_TK}
        s_mov_b32 s{self.S_CUR}, s{self.S_NSLOT}
        s_mov_b32 s{self.S_ECUR}, s{self.S_NSLOT}
        s_mov_b32 s{self.S_STEPS}, s{self.S_NSTEPS}
        ''')
        self.setup_next(A, 'B')
        z = self.B0
        A(f'''
        v_mov_b32 v{z+4}, {self.L_TK}
        v_mov_b32 v{z+5}, 1
        s_mov_b64 exec, 1
        ds_add_rtn_u32 v{self.V_TK}, v{z+4}, v{z+5}
        s_mov_b64 exec, -1
        ''')
        return A.l

    def prologue(self):
        A = Asm(); NW, NP = self.NW, self.NP
        L = self.V_LANE
        A(f'''
        aggregate_kernel:
        s_cmp_ge_u32 s2, 256
        s_cbranch_scc1 K2_END
        s_load_dwordx2 s[4:5], s[0:1], 0
        s_load_dwordx2 s[6:7], s[0:1], 16
        s_load_dwordx2 s[90:91], s[0:1], 72
        s_load_dwordx2 s[92:93], s[0:1], 88
        v_lshrrev_b32 v1, 6, v0
        v_and_b32 v{L}, 63, v0
        s_and_b32 s{self.S_B}, s2, 7
        v_readfirstlane_b32 s{self.S_W}, v1
        s_lshl_b32 s{self.S_B}, s{self.S_B}, 5
        s_lshr_b32 s{self.S_T0}, s2, 3
        s_add_u32 s{self.S_B}, s{self.S_B}, s{self.S_T0}
        s_mul_i32 s{self.S_T0}, s{self.S_B}, {NPB}
        s_sub_u32 s{self.S_T0}, {N}, s{self.S_T0}
        s_min_u32 s{self.S_NN}, s{self.S_T0}, {NPB}
        s_waitcnt lgkmcnt(0)
        ''')
        self.st(A, 0)
        srd(A, self.S_X, 4, 5, N * 512)
        srd(A, self.S_EA, 6, 7, E * 32)
        srd(A, self.S_WS, 92, 93, WS_END)
        srd(A, self.S_OUT, 90, 91, N * 512)
        ws = f's[{self.S_WS}:{self.S_WS+3}]'
        A(f'v_lshlrev_b32 v2, 4, v{L}\ns_lshl_b32 s{self.S_T0}, s{self.S_W}, 10')
        for k in range(-(-20 // NW)):
            if (k + 1) * NW > 20:
                A(f's_cmp_ge_u32 s{self.S_W}, {20 - k*NW}\ns_cbranch_scc1 K2_WDONE')
            A(f'''
            s_add_u32 m0, s{self.S_T0}, {self.L_WT + k*NW*1024}
            s_add_u32 s{self.S_T1}, s{self.S_T0}, {WS_WT + k*NW*1024}
            buffer_load_dwordx4 v2, {ws}, s{self.S_T1} offen lds
            ''')
        A('K2_WDONE:')
        A(f'''
        s_mov_b32 s{self.S_BOT}, 0xffff0000
        s_mov_b32 s{self.S_BOT+1}, 0xffff0000
        s_and_b32 s{self.S_T0}, s{self.S_W}, 1
        s_lshl_b32 s{self.S_T1}, s{self.S_T0}, 3
        s_lshl_b32 s{self.S_AMASK}, 0x00ff00ff, s{self.S_T1}
        s_mov_b32 s{self.S_AMASK+1}, s{self.S_AMASK}
        s_mov_b32 s{self.S_EMASK}, 0x03ffffff
        s_mul_i32 s{self.S_XB}, s{self.S_W}, {self.XW}
        s_add_u32 s{self.S_XB}, s{self.S_XB}, {self.L_X}
        s_lshr_b32 s{self.S_AB}, s{self.S_W}, 1
        s_lshl_b32 s{self.S_AB}, s{self.S_AB}, 10
        s_add_u32 s{self.S_AB}, s{self.S_AB}, {self.L_A}
        s_lshl_b32 s{self.S_T0}, s{self.S_T0}, 7
        s_add_u32 s{self.S_T0}, s{self.S_T0}, s{self.S_AB}
        v_lshrrev_b32 v3, 5, v{L}
        v_bfe_u32 v4, v{L}, 4, 1
        v_bfe_u32 v5, v{L}, 2, 2
        v_and_b32 v6, 3, v{L}
        v_mul_u32_u24 v7, {self.XROW}, v5
        v_lshl_add_u32 v7, v3, 9, v7
        v_lshl_add_u32 v7, v4, 5, v7
        v_lshl_add_u32 v7, v6, 3, v7
        v_add_u32 v{self.V_TRB}, s{self.S_XB}, v7
        v_lshrrev_b32 v7, 1, v6
        v_lshl_add_u32 v7, v3, 1, v7
        v_lshlrev_b32 v7, 8, v7
        v_lshl_add_u32 v7, v5, 4, v7
        v_and_b32 v8, 1, v6
        v_lshl_add_u32 v7, v8, 3, v7
        v_add_u32 v{self.V_TRA}, s{self.S_T0}, v7
        v_and_b32 v7, 7, v{L}
        v_lshl_add_u32 v7, v3, 3, v7
        v_lshlrev_b32 v{self.V_EL}, 2, v7
        v_and_b32 v7, 31, v{L}
        v_lshlrev_b32 v{self.V_XL}, 4, v7
        v_lshlrev_b32 v{self.V_EAP}, 4, v4
        v_mul_u32_u24 v7, 0x8000, v4
        v_lshl_or_b32 v{self.V_ODM}, v7, 16, v7
        v_add_u32 v{self.V_WA}, {self.L_WT}, v2
        s_mov_b32 s{self.S_C0}, 0
        s_mov_b32 s{self.S_NC}, {NCH}
        s_mov_b32 s{self.S_P0}, 0
        s_mov_b32 s{self.S_SUB}, 0
        s_mov_b32 s{self.S_FIRST}, 1
        K2_WIN:
        ''')
        TB, AD, RM, EN, RK = 10, 20, 30, 40, 100
        A(f'''
        v_lshrrev_b32 v4, 4, v{L}
        v_lshlrev_b32 v5, 10, v4
        s_lshl_b32 s{self.S_T0}, s{self.S_W}, 12
        s_lshl_b32 s{self.S_T1}, s{self.S_B}, 2
        s_add_u32 s{self.S_T0}, s{self.S_T0}, s{self.S_T1}
        s_add_u32 s{self.S_T0}, s{self.S_T0}, {WS_TAB}
        ''')
        for p in range(NP):
            A(f'buffer_load_dword v{TB+p}, v5, {ws}, s{self.S_T0} offen')
            if p + 1 < NP: A(f's_add_u32 s{self.S_T0}, s{self.S_T0}, {NW*4096}')
        A(f'''
        s_cmp_lg_u32 s{self.S_W}, 0
        s_cbranch_scc1 K2_NOINIT
        v_lshlrev_b32 v6, 2, v{L}
        v_mov_b32 v7, 0
        v_cmp_eq_u32 vcc, {NPB}, v{L}
        v_mov_b32 v8, {2*NW}
        v_mov_b32 v9, 0xffff0000
        v_cndmask_b32 v7, v7, v8, vcc
        v_cmp_ge_u32 vcc, {NPB}, v{L}
        s_mov_b64 exec, vcc
        ds_write_b32 v6, v7 offset:{self.L_CNT}
        s_mov_b64 exec, 0xffff
        v_mov_b32 v8, 0x03ffffe0
        ds_write_b32 v6, v9 offset:{self.L_PAD+64}
        ds_write_b32 v6, v8 offset:{self.L_PAD+128}
        s_mov_b64 exec, -1
        K2_NOINIT:
        s_lshl_b32 s{self.S_T0}, s{self.S_C0}, 10
        s_add_u32 s{self.S_T0}, s{self.S_T0}, s{self.S_T1}
        s_add_u32 s{self.S_T0}, s{self.S_T0}, {WS_TAB}
        s_buffer_load_dword s{self.S_T2}, {ws}, s{self.S_T0}
        s_lshl_b32 s{self.S_T1}, s{self.S_W}, 2
        v_add_u32 v4, s{self.S_T1}, v4
        v_and_b32 v6, 15, v{L}
        s_waitcnt lgkmcnt(0)
        s_barrier
        s_lshr_b32 s{self.S_T2}, s{self.S_T2}, 16
        s_add_u32 s{self.S_T3}, s{self.S_P0}, {CAP}
        s_add_u32 s{self.S_NC0}, s{self.S_C0}, s{self.S_NC}
        s_mov_b32 s{self.S_NP0}, 0
        s_mov_b32 s{self.S_NSUB}, 0
        s_cmp_eq_u32 s{self.S_SUB}, 0
        s_cbranch_scc1 K2_NOSUB
        s_cmp_ge_u32 s{self.S_T3}, s{self.S_T2}
        s_cbranch_scc1 K2_SUBSET
        s_mov_b32 s{self.S_NC0}, s{self.S_C0}
        s_mov_b32 s{self.S_NP0}, s{self.S_T3}
        s_mov_b32 s{self.S_NSUB}, 1
        s_branch K2_SUBSET
        K2_NOSUB:
        s_mov_b32 s{self.S_T3}, 0xffff
        K2_SUBSET:
        s_cmp_ge_u32 s{self.S_NC0}, {NCH}
        s_cselect_b32 s{self.S_LAST}, 1, 0
        v_mov_b32 v9, 0
        ''')
        self.st(A, 1)
        for p in range(NP):
            A(f's_waitcnt vmcnt({NP-1-p})')
            A(f'''
            v_lshrrev_b32 v7, 16, v{TB+p}
            v_subrev_u32 v8, s{self.S_C0}, v4
            v_min_u32 v7, s{self.S_T3}, v7
            v_cmp_gt_u32 vcc, s{self.S_NC}, v8
            v_subrev_u32 v7, s{self.S_P0}, v7
            v_and_b32 v8, 0xffff, v{TB+p}
            v_cndmask_b32 v7, 0, v7, vcc
            v_add3_u32 v8, v8, v6, s{self.S_P0}
            v_sub_u32 v{RM+p}, v7, v6
            v_mul_u32_u24 v8, 12, v8
            v_mul_u32_u24 v7, {CH*12}, v4
            v_cmp_lt_i32 s[{self.S_M+4*p}:{self.S_M+4*p+1}], 0, v{RM+p}
            v_cmp_lt_i32 s[{self.S_M+4*p+2}:{self.S_M+4*p+3}], 16, v{RM+p}
            v_add_u32 v{AD+p}, v7, v8
            v_max_i32 v9, v9, v{RM+p}
            v_add_u32 v4, {4*NW}, v4
            ''')
        A(f's_mov_b32 s{self.S_T0}, {WS_ENT}')
        for sub in range(2):
            for p in range(NP):
                m = self.S_M + 4 * p + 2 * sub
                r = EN + 4 * (sub * NP + p)
                A(f's_mov_b64 exec, s[{m}:{m+1}]\nbuffer_load_dwordx3 v[{r}:{r+2}], v{AD+p}, {ws}, s{self.S_T0} offen offset:{192*sub}')
        A('s_mov_b64 exec, -1\nv_mov_b32 v2, 1')
        self.st(A, 2)
        RK = EN + 4 * 2 * NP
        G = 2 * NP
        for g in range(G):
            sub, p = divmod(g, NP); m = self.S_M + 4 * p + 2 * sub; r = EN + 4 * g
            A(f'''
            s_waitcnt vmcnt({G-1-g})
            s_mov_b64 exec, s[{m}:{m+1}]
            v_lshrrev_b32 v{r+3}, 26, v{r+2}
            v_lshlrev_b32 v3, 2, v{r+3}
            ds_add_rtn_u32 v{RK+g}, v3, v2 offset:{self.L_CNT}
            ''')
        def place(rk, r):
            return f'''
            v_min_u32 v{rk}, {CAP-1}, v{rk}
            v_mul_u32_u24 v{r+3}, {SLOT}, v{r+3}
            v_lshrrev_b32 v3, 4, v{rk}
            v_lshl_add_u32 v{r+3}, v{rk}, 2, v{r+3}
            v_lshl_add_u32 v{r+3}, v3, 7, v{r+3}
            ds_write2_b32 v{r+3}, v{r}, v{r+1} offset0:{self.L_SL//4} offset1:{self.L_SL//4+16}
            ds_write_b32 v{r+3}, v{r+2} offset:{self.L_SL+128}
            '''
        A('s_waitcnt lgkmcnt(0)')
        for g in range(G):
            sub, p = divmod(g, NP); m = self.S_M + 4 * p + 2 * sub
            A(f's_mov_b64 exec, s[{m}:{m+1}]')
            A(place(RK + g, EN + 4 * g))
        self.st(A, 3)
        A(f'''
        s_mov_b64 exec, -1
        s_mov_b32 s{self.S_T1}, 32
        s_add_u32 s{self.S_T0}, s{self.S_T0}, 384
        K2_XLOOP:
        v_cmp_lt_i32 vcc, s{self.S_T1}, v9
        s_cbranch_vccz K2_XDONE
        ''')
        for p in range(NP):
            A(f'''
            v_cmp_lt_i32 vcc, s{self.S_T1}, v{RM+p}
            s_and_saveexec_b64 s[{self.S_M}:{self.S_M+1}], vcc
            s_cbranch_execz K2_XS{p}
            buffer_load_dwordx3 v[{EN}:{EN+2}], v{AD+p}, {ws}, s{self.S_T0} offen
            s_waitcnt vmcnt(0)
            v_lshrrev_b32 v{EN+3}, 26, v{EN+2}
            v_lshlrev_b32 v3, 2, v{EN+3}
            ds_add_rtn_u32 v{RK}, v3, v2 offset:{self.L_CNT}
            s_waitcnt lgkmcnt(0)
            ''')
            A(place(RK, EN))
            A(f'K2_XS{p}:\ns_mov_b64 exec, -1')
        A(f'''
        s_add_u32 s{self.S_T1}, s{self.S_T1}, 16
        s_add_u32 s{self.S_T0}, s{self.S_T0}, 192
        s_branch K2_XLOOP
        K2_XDONE:
        v_lshlrev_b32 v3, 2, v{L}
        v_cmp_gt_u32 vcc, {NPB}, v{L}
        v_mov_b32 v{self.V_CNT}, 0
        s_waitcnt vmcnt(0) lgkmcnt(0)
        s_barrier
        s_mov_b64 exec, vcc
        ds_read_b32 v{self.V_CNT}, v3 offset:{self.L_CNT}
        s_mov_b64 exec, -1
        s_waitcnt lgkmcnt(0)
        v_cmp_lt_u32 vcc, {CAP}, v{self.V_CNT}
        s_cbranch_vccz K2_FITS
        s_barrier
        s_cmp_gt_u32 s{self.S_NC}, 1
        s_cselect_b32 s{self.S_SUB}, 0, 1
        s_add_u32 s{self.S_NC}, s{self.S_NC}, 1
        s_lshr_b32 s{self.S_NC}, s{self.S_NC}, 1
        s_branch K2_WIN
        K2_FITS:
        s_mov_b32 s{self.S_TK}, s{self.S_W}
        ''')
        self.st(A, 4)
        self.setup_next(A, 'A')
        A(f'''
        s_cmp_eq_u32 s{self.S_NSTEPS}, 0
        s_cbranch_scc1 K2_DONE
        v_add_u32 v{self.V_EA}, s{self.S_NSLOT}, v{self.V_EL}
        s_add_u32 s{self.S_T0}, s{self.S_W}, {NW}
        ds_read2_b32 v[{self.E0}:{self.E0+1}], v{self.V_EA} offset0:0 offset1:16
        ds_read_b32 v{self.E0+2}, v{self.V_EA} offset:128
        v_mov_b32 v{self.V_TK}, s{self.S_T0}
        s_waitcnt lgkmcnt(0)
        ''')
        for g in self.dma_items():
            for x in g: A(x)
        for x in self.zero_uz(): A(x)
        return A.l

    def epilogue(self):
        A = Asm(); L = self.V_LANE
        ws = f's[{self.S_WS}:{self.S_WS+3}]'
        FR, AC, BB = 0, 80, 144
        A('K2_DONE:')
        self.st(A, 5)
        A(f'''
        v_lshlrev_b32 v{self.T0}, 4, v{L}
        s_cmp_ge_u32 s{self.S_W}, 4
        s_cbranch_scc1 K2_NOFR
        s_lshr_b32 s{self.S_T0}, s{self.S_W}, 1
        s_mul_i32 s{self.S_T0}, s{self.S_T0}, 20480
        s_add_u32 s{self.S_T0}, s{self.S_T0}, {WS_FRAG}
        s_waitcnt vmcnt(0)
        ''')
        for ks in range(20):
            if ks and ks % 4 == 0: A(f's_add_u32 s{self.S_T0}, s{self.S_T0}, 4096')
            A(f'buffer_load_dwordx4 v[{FR+4*ks}:{FR+4*ks+3}], v{self.T0}, {ws}, s{self.S_T0} offen offset:{(ks%4)*1024}')
        A(f'''
        K2_NOFR:
        s_waitcnt lgkmcnt(0)
        s_barrier
        ''')
        self.st(A, 6)
        if self.dump:
            A(f'''
            s_mul_i32 s{self.S_T1}, s{self.S_B}, 0x12000
            s_add_u32 s{self.S_T1}, s{self.S_T1}, {1<<25}
            s_mov_b32 s{self.S_WS+2}, {1<<27}
            s_lshl_b32 s{self.S_T2}, s{self.S_W}, 10
            v_add_u32 v200, s{self.S_T2}, v{self.T0}
            ''')
            for k in range(9):
                A(f'''
                ds_read_b128 v[204:207], v200 offset:{self.L_SL}
                s_waitcnt lgkmcnt(0)
                buffer_store_dwordx4 v[204:207], v200, {ws}, s{self.S_T1} offen
                s_waitcnt vmcnt(0)
                v_add_u32 v200, {self.NW*1024}, v200
                ''')
            A(f's_mov_b32 s{self.S_WS+2}, {WS_END}')
        A(f'''
        s_cmp_ge_u32 s{self.S_W}, 4
        s_cbranch_scc1 K2_NEXTWIN
        s_and_b32 s{self.S_T0}, s{self.S_W}, 1
        s_lshl_b32 s{self.S_T0}, s{self.S_T0}, 5
        v_and_b32 v{self.T0+1}, 31, v{L}
        v_add_u32 v{self.T0+1}, s{self.S_T0}, v{self.T0+1}
        v_lshrrev_b32 v{self.T0+2}, 5, v{L}
        v_mul_u32_u24 v{self.T0+3}, {SLOT}, v{self.T0+1}
        v_lshl_add_u32 v{self.T0+3}, v{self.T0+2}, 4, v{self.T0+3}
        ''')
        jobs = [(0, ks, ks * 32) for ks in range(8)]
        for j in range(3):
            jobs += [(1 + j, 8 + ks, 256 + 256 * j + ks * 32) for ks in range(8)]
            jobs += [(1 + j, 16 + ks, 1024 + 128 * j + ks * 32) for ks in range(4)]
        NB = 8
        def rd(i): return f'ds_read_b128 v[{BB+4*(i%NB)}:{BB+4*(i%NB)+3}], v{self.T0+3} offset:{self.L_SL+jobs[i][2]}'
        for i in range(NB - 1): A(rd(i))
        A('s_waitcnt vmcnt(0)')
        seen = set()
        for i, (part, ks, off) in enumerate(jobs):
            if i + NB - 1 < len(jobs): A(rd(i + NB - 1)); out = NB - 1
            else: out = len(jobs) - 1 - i
            A(f's_waitcnt lgkmcnt({out})')
            d = AC + 16 * part; b = BB + 4 * (i % NB)
            c = f'v[{d}:{d+15}]' if part in seen else '0'
            seen.add(part)
            A(f'v_mfma_f32_32x32x16_bf16 v[{d}:{d+15}], v[{FR+4*ks}:{FR+4*ks+3}], v[{b}:{b+3}], {c}')
        A(f'''
        s_lshl_b32 s{self.S_T0}, s{self.S_B}, 2
        s_add_u32 s{self.S_T0}, s{self.S_T0}, s{self.S_W}
        s_lshl_b32 s{self.S_T0}, s{self.S_T0}, 14
        s_nop 7
        s_cmp_lg_u32 s{self.S_FIRST}, 0
        s_cbranch_scc1 K2_NOLOADP
        s_mov_b32 s{self.S_T1}, s{self.S_T0}
        ''')
        for k in range(16):
            if k and k % 4 == 0: A(f's_add_u32 s{self.S_T1}, s{self.S_T1}, 4096')
            A(f'buffer_load_dwordx4 v[{4*k}:{4*k+3}], v{self.T0}, {ws}, s{self.S_T1} offen offset:{(k%4)*1024} sc1')
        A('s_waitcnt vmcnt(0)')
        for k in range(64): A(f'v_add_f32 v{AC+k}, v{AC+k}, v{k}')
        A(f'''
        K2_NOLOADP:
        s_cmp_lg_u32 s{self.S_LAST}, 0
        s_cbranch_scc1 K2_FINAL
        ''')
        for k in range(16):
            if k and k % 4 == 0: A(f's_add_u32 s{self.S_T0}, s{self.S_T0}, 4096')
            A(f'buffer_store_dwordx4 v[{AC+4*k}:{AC+4*k+3}], v{self.T0}, {ws}, s{self.S_T0} offen offset:{(k%4)*1024} sc1')
        A(f'''
        s_waitcnt vmcnt(0)
        s_branch K2_NEXTWIN
        K2_FINAL:
        s_mul_i32 s{self.S_T0}, s{self.S_B}, {NPB*512}
        s_lshr_b32 s{self.S_T1}, s{self.S_W}, 1
        s_lshl_b32 s{self.S_T1}, s{self.S_T1}, 6
        s_add_u32 s{self.S_T0}, s{self.S_T0}, s{self.S_T1}
        v_lshlrev_b32 v{self.T0+3}, 9, v{self.T0+1}
        v_lshl_add_u32 v{self.T0+3}, v{self.T0+2}, 5, v{self.T0+3}
        v_cmp_gt_u32 vcc, s{self.S_NN}, v{self.T0+1}
        ''')
        for k in range(16): A(f'v_mul_f32 v{k}, 0xbfb8aa3b, v{AC+k}')
        for k in range(16): A(f'v_exp_f32 v{k}, v{k}')
        for k in range(16): A(f'v_add_f32 v{k}, 1.0, v{k}')
        for k in range(16): A(f'v_rcp_f32 v{k}, v{k}')
        for k in range(8): A(f'v_cvt_pk_bf16_f32 v{16+k}, v{AC+2*k}, v{AC+2*k+1}')
        for j in range(3):
            for k in range(16): A(f'v_mul_f32 v{AC+16+16*j+k}, v{AC+16+16*j+k}, v{k}')
            for k in range(8): A(f'v_cvt_pk_bf16_f32 v{24+8*j+k}, v{AC+16+16*j+2*k}, v{AC+16+16*j+2*k+1}')
        A('s_mov_b64 exec, vcc')
        for part in range(4):
            for hf in range(2):
                r = 16 + 8 * part + 4 * hf
                A(f'buffer_store_dwordx4 v[{r}:{r+3}], v{self.T0+3}, s[{self.S_OUT}:{self.S_OUT+3}], s{self.S_T0} offen offset:{128*part+16*hf}')
        A('s_mov_b64 exec, -1\nK2_NEXTWIN:')
        if self.stamp:
            A('s_waitcnt vmcnt(0)')
            self.st(A, 7)
            if self.stamp == 2:
                for k, (ln, inv) in enumerate(((0, 1), (0, 0), (4, 0), (5, 0), (7, 0))):
                    A(f's_nop 1\nv_readlane_b32 s94, v255, {ln}\ns_nop 3')
                    dbg_atomic(A, 94, 4 + k, inv, 512)
                    dbg_atomic(A, 94, 10 + k, inv, 0)
            A(f'''
            s_mov_b32 s{self.S_WS+2}, {1<<27}
            s_lshl_b32 s{self.S_T0}, s2, 3
            s_add_u32 s{self.S_T0}, s{self.S_T0}, s{self.S_W}
            s_lshl_b32 s{self.S_T0}, s{self.S_T0}, 5
            s_add_u32 s{self.S_T0}, s{self.S_T0}, {1<<26}
            v_lshlrev_b32 v254, 2, v{L}
            s_mov_b64 exec, 0xff
            buffer_store_dword v255, v254, {ws}, s{self.S_T0} offen
            s_mov_b64 exec, -1
            s_mov_b32 s{self.S_WS+2}, {WS_END}
            ''')
        A(f'''
        s_cmp_lg_u32 s{self.S_LAST}, 0
        s_cbranch_scc1 K2_END
        s_mov_b32 s{self.S_C0}, s{self.S_NC0}
        s_mov_b32 s{self.S_P0}, s{self.S_NP0}
        s_mov_b32 s{self.S_SUB}, s{self.S_NSUB}
        s_mov_b32 s{self.S_FIRST}, 0
        s_waitcnt vmcnt(0) lgkmcnt(0)
        s_barrier
        s_branch K2_WIN
        K2_END:
        s_endpgm
        ''')
        return A.l

    def gen(self):
        pro, ns, s1, s2, con, epi = self.prologue(), self.node_start(), self.step(True), self.step(False), self.contract(), self.epilogue()
        A = Asm()
        A.ext(pro); A('K2_NODE:'); A.ext(ns); A.ext(s1)
        A('s_cbranch_scc0 K2_CON\nK2_REST:'); A.ext(s2); A('s_cbranch_scc1 K2_REST\nK2_CON:'); A.ext(con)
        A(f's_cmp_lg_u32 s{self.S_NSTEPS}, 0\ns_cbranch_scc1 K2_NODE')
        A.ext(epi)
        br = ['s_nop 0']
        bad = check(pro + ns + s1 + br + s2 + br + s2 + br + con + br + ns + s1 + br + con + br + epi, 'k2')
        return A.l, bad


def build(NW=8, eflag='nt', xflag='', dump=0, stamp=0, probe=''):
    k1 = gen_k1(stamp == 2)
    bad = check(k1, 'k1')
    k2o = K2(NW, eflag, xflag, dump, stamp)
    k2, b2 = k2o.gen()
    assert bad + b2 == 0, 'hazards'
    hdr = f'''; Equiformer tensor-product message passing, two launches.
; @launch kernel=sort_edges_kernel grid=(256,1,1) block=(832,1,1) lds={K1_LDS}
; @launch kernel=aggregate_kernel grid=(256,1,1) block=({NW*64},1,1) lds={k2o.LDS}
.amdgcn_target "amdgcn-amd-amdhsa--gfx950"
.text
'''
    s = hdr
    extra = ''
    if probe:
        pre = {'empty': '; @launch kernel=probe_kernel grid=(256,1,1) block=(64,1,1) lds=0\n',
               'empty2': '; @launch kernel=probe_kernel grid=(256,1,1) block=(64,1,1) lds=0\n' * 4,
               'ea': '; @launch kernel=probe_kernel grid=(250,1,1) block=(1024,1,1) lds=0\n',
               'ea2': '; @launch kernel=probe_kernel grid=(250,1,1) block=(1024,1,1) lds=0\n' * 2}[probe]
        s = s.replace('; @launch kernel=sort', pre + '; @launch kernel=sort')
        A = Asm()
        A('probe_kernel:')
        if probe.startswith('ea'):
            A('s_cmp_ge_u32 s2, 250\ns_cbranch_scc1 P_END\ns_load_dwordx2 s[4:5], s[0:1], 16\nv_lshlrev_b32 v1, 4, v0\ns_waitcnt lgkmcnt(0)')
            srd(A, 8, 4, 5, E * 32)
            A('s_mul_i32 s3, s2, 102400')
            for k in range(7): A(f'buffer_load_dwordx4 v[{4+4*k}:{7+4*k}], v1, s[8:11], s3 offen\ns_add_u32 s3, s3, 16384')
            A('s_waitcnt vmcnt(0)')
        A('P_END:\ns_endpgm')
        s += '.globl probe_kernel\n.p2align 8\n.type probe_kernel,@function\n' + '\n'.join(A.l) + '\n'
        extra = desc('probe_kernel', 40, 32)
    for name, body in (('sort_edges_kernel', k1), ('aggregate_kernel', k2)):
        s += f'.globl {name}\n.p2align 8\n.type {name},@function\n' + '\n'.join(body) + '\n'
    s += desc('sort_edges_kernel', 48, 102 if stamp == 2 else 64) + desc('aggregate_kernel', 256, 102) + extra
    return s


if __name__ == '__main__':
    out = sys.argv[1] if len(sys.argv) > 1 else 'gather_scatter__tensor_product_equiv_equiformer__graph.s'
    kw = dict(a.split('=') for a in sys.argv[2:])
    for k in kw:
        if kw[k].isdigit(): kw[k] = int(kw[k])
    open(out, 'w').write(build(**kw))
    print('wrote', out)
```

```python
import sys
from hazard import check

N, E = 12500, 800000
NPB = 49
NCH, CH = 250, 3200
CAP = 112
SLOT = 1424
WS_PART = 0
WS_ENT = 16777216
WS_WT = WS_ENT + NCH * CH * 12
WS_FRAG = WS_WT + 20480
WS_TAB = WS_FRAG + 40960
WS_END = WS_TAB + NCH * 1024
DPPM = 'row_mask:0xf bank_mask:0xf'


class Asm:
    def __init__(self): self.l = []
    def __call__(self, s):
        for x in s.strip('\n').split('\n'):
            self.l.append(x.strip() if x.strip().endswith(':') else '    ' + x.strip())
    def ext(self, lines): self.l += lines


def srd(A, d, lo, hi, size):
    A(f's_mov_b32 s{d}, s{lo}\ns_and_b32 s{d+1}, s{hi}, 0xffff\ns_mov_b32 s{d+2}, {size}\ns_mov_b32 s{d+3}, 0x20000')


def desc(name, vgpr, sgpr):
    return f'''.section .rodata,"a"
.p2align 6
.amdhsa_kernel {name}
  .amdhsa_next_free_vgpr {vgpr}
  .amdhsa_next_free_sgpr {sgpr}
  .amdhsa_accum_offset {(vgpr + 3) // 4 * 4}
  .amdhsa_group_segment_fixed_size 0
  .amdhsa_kernarg_size 96
  .amdhsa_user_sgpr_count 2
  .amdhsa_user_sgpr_kernarg_segment_ptr 1
  .amdhsa_system_sgpr_workgroup_id_x 1
.end_amdhsa_kernel
'''


K1_CNT, K1_OFF, K1_LDS = 38400, 39424, 40448


def dbg_atomic(A, sreg, slot, inv, back=0):
    A(f'''
    s_load_dwordx2 s[96:97], s[0:1], 80
    s_waitcnt lgkmcnt(0)
    s_sub_u32 s96, s96, {back}
    s_subb_u32 s97, s97, 0
    s_and_b32 s97, s97, 0xffff
    s_mov_b32 s98, 256
    s_mov_b32 s99, 0x20000
    ''')
    A(f's_not_b32 s95, s{sreg}' if inv else f's_mov_b32 s95, s{sreg}')
    A(f'''
    s_mov_b64 exec, 1
    v_mov_b32 v1, s95
    v_mov_b32 v2, {4*slot}
    buffer_atomic_umax v1, v2, s[96:99], 0 offen
    s_waitcnt vmcnt(0)
    s_mov_b64 exec, -1
    ''')


def gen_k1(dbgst=0):
    A = Asm()
    A('''
    sort_edges_kernel:
    s_cmp_ge_u32 s2, 256
    s_cbranch_scc1 K1_END
    s_load_dwordx2 s[4:5], s[0:1], 8
    s_load_dwordx4 s[8:11], s[0:1], 24
    s_load_dwordx4 s[32:35], s[0:1], 40
    s_load_dwordx2 s[36:37], s[0:1], 56
    s_load_dwordx2 s[6:7], s[0:1], 88
    v_lshlrev_b32 v1, 4, v0
    v_mul_u32_u24 v2, 24, v0
    v_lshrrev_b32 v3, 6, v0
    v_and_b32 v40, 63, v0
    v_readfirstlane_b32 s38, v3
    s_waitcnt lgkmcnt(0)
    ''')
    if dbgst: A('s_memrealtime s[90:91]\ns_waitcnt lgkmcnt(0)')
    srd(A, 12, 4, 5, E * 6)
    srd(A, 16, 8, 9, E * 4)
    srd(A, 20, 10, 11, E * 4)
    srd(A, 24, 6, 7, WS_END)
    A(f'''
    s_cmp_ge_u32 s2, {NCH}
    s_cbranch_scc1 K1_PREP
    s_mul_i32 s28, s2, {CH * 4}
    s_mul_i32 s29, s2, {CH * 6}
    v_cmp_gt_u32 vcc, {CH // 4}, v0
    s_mov_b64 s[30:31], vcc
    s_mov_b64 exec, vcc
    buffer_load_dwordx4 v[4:7], v1, s[20:23], s28 offen
    buffer_load_dwordx4 v[8:11], v1, s[16:19], s28 offen
    buffer_load_dwordx4 v[12:15], v2, s[12:15], s29 offen
    buffer_load_dwordx2 v[16:17], v2, s[12:15], s29 offen offset:16
    s_mov_b64 exec, -1
    v_cmp_gt_u32 vcc, 0x100, v0
    v_lshlrev_b32 v18, 2, v0
    v_mov_b32 v19, 0
    s_mov_b64 exec, vcc
    ds_write_b32 v18, v19 offset:{K1_CNT}
    s_mov_b64 exec, -1
    s_mul_i32 s39, s2, {CH * 32}
    v_lshl_add_u32 v32, v0, 7, s39
    v_mov_b32 v41, 1
    s_waitcnt lgkmcnt(0)
    s_barrier
    s_mov_b64 exec, s[30:31]
    s_waitcnt vmcnt(3)
    ''')
    for i in range(4): A(f'v_mul_u32_u24 v{20+i}, 21400, v{4+i}')
    for i in range(4): A(f'v_lshrrev_b32 v{20+i}, 20, v{20+i}')
    for i in range(4): A(f'v_mul_u32_u24 v{28+i}, {NPB}, v{20+i}')
    for i in range(4): A(f'v_lshlrev_b32 v{20+i}, 2, v{20+i}')
    for i in range(4): A(f'ds_add_rtn_u32 v{24+i}, v{20+i}, v41 offset:{K1_CNT}')
    for i in range(4): A(f'v_sub_u32 v{28+i}, v{4+i}, v{28+i}')
    for i in range(1, 4): A(f'v_add_u32 v{32+i}, {32*i}, v32')
    for i in range(4): A(f'v_lshl_or_b32 v{28+i}, v{28+i}, 26, v{32+i}')
    A('''
    s_mov_b32 s40, 0x05040100
    s_mov_b32 s41, 0x05040302
    s_waitcnt vmcnt(0)
    v_alignbit_b32 v33, v14, v13, 16
    v_alignbit_b32 v35, v17, v16, 16
    v_perm_b32 v36, v8, v13, s40
    v_perm_b32 v37, v9, v14, s41
    v_perm_b32 v38, v10, v16, s40
    v_perm_b32 v39, v11, v17, s41
    v_mov_b32 v32, v12
    v_mov_b32 v34, v15
    v_xor_b32 v36, 0x8000, v36
    v_xor_b32 v37, 0x8000, v37
    v_xor_b32 v38, 0x8000, v38
    v_xor_b32 v39, 0x8000, v39
    s_mov_b64 exec, -1
    v_lshlrev_b32 v42, 4, v40
    s_waitcnt lgkmcnt(0)
    s_barrier
    ''')
    A(f'''
    ds_read_b128 v[4:7], v42 offset:{K1_CNT}
    s_waitcnt lgkmcnt(0)
    v_add_u32 v8, v4, v5
    v_add_u32 v9, v8, v6
    v_add_u32 v10, v9, v7
    v_mov_b32 v11, v10
    s_nop 1
    ''')
    for sh in ('row_shr:1', 'row_shr:2', 'row_shr:4', 'row_shr:8'):
        A(f'v_add_u32_dpp v11, v11, v11 {sh} {DPPM}\ns_nop 1')
    A('v_add_u32_dpp v11, v11, v11 row_bcast:15 row_mask:0xa bank_mask:0xf\ns_nop 1')
    A('v_add_u32_dpp v11, v11, v11 row_bcast:31 row_mask:0xc bank_mask:0xf')
    A(f'''
    v_sub_u32 v12, v11, v10
    v_add_u32 v13, v12, v4
    v_add_u32 v14, v12, v8
    v_add_u32 v15, v12, v9
    ds_write_b128 v42, v[12:15] offset:{K1_OFF}
    s_cmp_lg_u32 s38, 0
    s_cbranch_scc1 K1_NOTAB
    v_lshl_or_b32 v44, v4, 16, v12
    v_lshl_or_b32 v45, v5, 16, v13
    v_lshl_or_b32 v46, v6, 16, v14
    v_lshl_or_b32 v47, v7, 16, v15
    s_lshl_b32 s42, s2, 10
    s_add_u32 s42, s42, {WS_TAB}
    buffer_store_dwordx4 v[44:47], v42, s[24:27], s42 offen
    K1_NOTAB:
    s_mov_b64 exec, s[30:31]
    ''')
    for i in range(4): A(f'ds_read_b32 v{4+i}, v{20+i} offset:{K1_OFF}')
    for i in range(4):
        A(f's_waitcnt lgkmcnt({3-i})\nv_add_u32 v{4+i}, v{4+i}, v{24+i}\nv_mul_u32_u24 v{4+i}, 12, v{4+i}')
    for i in range(4):
        A(f'ds_write2_b32 v{4+i}, v{32+i}, v{36+i} offset0:0 offset1:1\nds_write_b32 v{4+i}, v{28+i} offset:8')
    A(f'''
    s_mul_i32 s42, s2, {CH * 12}
    s_add_u32 s42, s42, {WS_ENT}
    s_add_u32 s43, s42, 12800
    s_add_u32 s44, s42, 25600
    s_waitcnt lgkmcnt(0)
    s_barrier
    ds_read_b128 v[4:7], v1
    ds_read_b128 v[8:11], v1 offset:12800
    ds_read_b128 v[12:15], v1 offset:25600
    s_waitcnt lgkmcnt(2)
    buffer_store_dwordx4 v[4:7], v1, s[24:27], s42 offen
    s_waitcnt lgkmcnt(1)
    buffer_store_dwordx4 v[8:11], v1, s[24:27], s43 offen
    s_waitcnt lgkmcnt(0)
    buffer_store_dwordx4 v[12:15], v1, s[24:27], s44 offen
    ''')
    if dbgst:
        A('s_waitcnt vmcnt(0)\ns_memrealtime s[92:93]\ns_waitcnt lgkmcnt(0)')
        A(f'''
        s_cmp_lg_u32 s38, 0
        s_cbranch_scc1 K1_STX
        s_mov_b32 s26, {1<<27}
        s_lshl_b32 s42, s2, 3
        s_add_u32 s42, s42, {(1<<26)+(1<<20)}
        v_mov_b32 v4, s90
        v_mov_b32 v5, s92
        v_mov_b32 v6, 0
        s_mov_b64 exec, 1
        buffer_store_dwordx2 v[4:5], v6, s[24:27], s42 offen
        K1_STX:
        ''')
    A(f'''
    s_endpgm
    K1_PREP:
    s_cmp_lg_u32 s2, {NCH}
    s_cbranch_scc1 K1_FRAG
    ''')
    srd(A, 12, 32, 33, 16 * 320 * 2)
    A('s_cmp_ge_u32 s38, 10\ns_cbranch_scc1 K1_END')
    for ps in range(2):
        A(f'''
        s_add_u32 s39, s38, {10 * ps}
        s_and_b32 s40, s39, 1
        s_lshr_b32 s41, s39, 1
        s_mul_i32 s40, s40, {8 * 640}
        s_lshl_b32 s41, s41, 6
        s_add_u32 s40, s40, s41
        v_lshrrev_b32 v4, 5, v40
        v_mul_u32_u24 v4, {4 * 640}, v4
        v_and_b32 v5, 31, v40
        v_lshl_add_u32 v4, v5, 1, v4
        v_mov_b32 v8, 0
        v_mov_b32 v9, 0
        v_mov_b32 v10, 0
        v_mov_b32 v11, 0
        ''')
        for r in range(4): A(f'buffer_load_short_d16_hi v{8+r}, v4, s[12:15], s40 offen offset:{640*r}')
        A(f'''
        s_lshl_b32 s41, s39, 10
        s_add_u32 s41, s41, {WS_WT}
        v_lshlrev_b32 v6, 4, v40
        s_waitcnt vmcnt(0)
        buffer_store_dwordx4 v[8:11], v6, s[24:27], s41 offen
        s_waitcnt vmcnt(0)
        ''')
    A('s_endpgm\nK1_FRAG:')
    srd(A, 12, 34, 35, 128 * 64 * 2)
    srd(A, 16, 36, 37, 192 * 64 * 2)
    A(f'''
    s_cmp_ge_u32 s38, 8
    s_cbranch_scc1 K1_END
    s_sub_u32 s39, s2, {NCH + 1}
    s_lshl_b32 s39, s39, 3
    s_add_u32 s39, s39, s38
    s_cmp_ge_u32 s39, 20
    s_cselect_b32 s40, 20, 0
    s_cselect_b32 s41, 64, 0
    s_sub_u32 s40, s39, s40
    v_bfe_u32 v4, v40, 2, 1
    v_bfe_u32 v5, v40, 3, 2
    v_and_b32 v6, 3, v40
    v_lshlrev_b32 v4, 4, v4
    v_lshl_add_u32 v4, v5, 2, v4
    v_add_u32 v4, v4, v6
    v_lshl_add_u32 v4, v4, 1, s41
    v_lshrrev_b32 v5, 5, v40
    s_lshl_b32 s45, s39, 10
    s_add_u32 s45, s45, {WS_FRAG}
    v_lshlrev_b32 v7, 4, v40
    s_cmp_ge_u32 s40, 16
    s_cbranch_scc1 K1_FRAGC
    v_lshl_add_u32 v4, v5, 9, v4
    s_and_b32 s43, s40, 7
    s_lshl_b32 s43, s43, 10
    s_add_u32 s44, s43, 8192
    s_cmp_ge_u32 s40, 8
    s_cbranch_scc1 K1_FRAGB
    ''')
    for n in range(4):
        A(f'buffer_load_ushort v{8+n}, v4, s[12:15], s43 offen offset:{128*n}')
        A(f'buffer_load_ushort v{12+n}, v4, s[12:15], s44 offen offset:{128*n}')
    A('s_branch K1_FRAGST\nK1_FRAGB:')
    for n in range(4):
        A(f'buffer_load_ushort v{8+n}, v4, s[16:19], s43 offen offset:{128*n}')
        A(f'buffer_load_ushort v{12+n}, v4, s[16:19], s44 offen offset:{128*n}')
    A('''
    s_branch K1_FRAGST
    K1_FRAGC:
    v_lshl_add_u32 v4, v5, 10, v4
    s_sub_u32 s43, s40, 16
    s_lshl_b32 s43, s43, 11
    s_add_u32 s43, s43, 16384
    ''')
    for n in range(4):
        A(f'buffer_load_ushort v{8+n}, v4, s[16:19], s43 offen offset:{256*n}')
        A(f'buffer_load_ushort v{12+n}, v4, s[16:19], s43 offen offset:{256*n+128}')
    A('''
    K1_FRAGST:
    s_waitcnt vmcnt(0)
    v_lshl_or_b32 v8, v12, 16, v8
    v_lshl_or_b32 v9, v13, 16, v9
    v_lshl_or_b32 v10, v14, 16, v10
    v_lshl_or_b32 v11, v15, 16, v11
    buffer_store_dwordx4 v[8:11], v7, s[24:27], s45 offen
    K1_END:
    s_endpgm
    ''')
    return A.l


class K2:
    def __init__(self, NW=8, eflag='nt', xflag='', dump=0, stamp=0):
        self.stamp = stamp; self.dump = dump; self.NW = NW; self.eflag = eflag; self.xflag = xflag
        self.XROW = 1088
        self.XW = 7 * self.XROW + 1024
        self.L_CNT = 0
        self.L_TK = NPB * 4
        self.L_PAD = self.L_TK + 4 - 64
        self.L_SL = 336
        self.L_WT = self.L_SL + NPB * SLOT - 16
        self.L_X = self.L_WT + 20480
        self.L_A = self.L_X + NW * self.XW
        self.LDS = self.L_A + ((NW + 1) // 2) * 1024
        assert self.LDS <= 163840, self.LDS
        self.NP = -(-NCH // (4 * NW))

    blk = dict(S0=0, Vz=8, Vx=16, Vy=24, Ux=32, Cy=40, Cx=48, Uy=56, Uz=64, D=72, Cz=80)
    B0 = 176
    OA, OB, OC = 208, 212, 216
    AU = 220
    T0 = 228
    MA, MB, MC, ME = 232, 233, 234, 235
    E0 = 236
    V_TRB, V_TRA, V_EL, V_XL, V_EAP, V_ODM, V_WA, V_CNT, V_TK, V_EA, V_LANE, V_SRC = range(239, 251)
    S_X, S_EA, S_WS, S_OUT = 8, 12, 16, 20
    S_W, S_B, S_NN = 3, 24, 25
    S_C0, S_NC, S_P0, S_SUB, S_FIRST, S_LAST, S_NC0, S_NP0, S_NSUB = range(26, 35)
    S_CUR, S_STEPS, S_ECUR, S_EPTR, S_NSLOT, S_NSTEPS, S_TK, S_XB, S_AB = range(35, 44)
    S_T0, S_T1, S_T2, S_T3 = 44, 45, 46, 47
    S_BOT, S_AMASK = 48, 50
    S_EMASK = 52
    S_M = 54

    def st(self, A, k):
        if self.stamp:
            A(f's_memrealtime s[100:101]\ns_waitcnt lgkmcnt(0)\nv_writelane_b32 v255, s100, {k}')

    def acc(self, name, t): return t * 88 + self.blk[name]
    def Breg(self, m, t): return self.B0 + (m * 2 + t) * 4

    def setup_next(self, A, tag):
        t0, t1, t2 = self.T0, self.T0 + 1, self.T0 + 2
        z = self.B0
        A(f'''
        s_mov_b32 s{self.S_NSLOT}, {self.L_PAD}
        s_mov_b32 s{self.S_NSTEPS}, 0
        v_mov_b32 v{z}, 0
        v_mov_b32 v{z+1}, 0xffff0000
        s_cmp_lt_u32 s{self.S_TK}, s{self.S_NN}
        s_cbranch_scc0 SN_{tag}
        v_readlane_b32 s{self.S_T0}, v{self.V_CNT}, s{self.S_TK}
        s_mul_i32 s{self.S_NSLOT}, s{self.S_TK}, {SLOT}
        v_mov_b32 v{z+2}, 0x03ffffe0
        s_add_u32 s{self.S_NSLOT}, s{self.S_NSLOT}, {self.L_SL}
        s_add_u32 s{self.S_T1}, s{self.S_T0}, 15
        s_lshr_b32 s{self.S_T1}, s{self.S_T1}, 4
        s_max_u32 s{self.S_NSTEPS}, s{self.S_T1}, 1
        s_lshl_b32 s{self.S_T1}, s{self.S_NSTEPS}, 4
        v_add_u32 v{t0}, s{self.S_T0}, v{self.V_LANE}
        v_cmp_gt_u32 vcc, s{self.S_T1}, v{t0}
        v_lshrrev_b32 v{t1}, 4, v{t0}
        v_lshl_add_u32 v{t2}, v{t0}, 2, s{self.S_NSLOT}
        v_lshl_add_u32 v{t2}, v{t1}, 7, v{t2}
        s_mov_b64 exec, vcc
        ds_write2_b32 v{t2}, v{z}, v{z+1} offset0:0 offset1:16
        ds_write_b32 v{t2}, v{z+2} offset:128
        s_mov_b64 exec, -1
        SN_{tag}:
        ''')

    def dma_items(self):
        t = self.T0
        it = []
        it.append([f'v_lshlrev_b32_sdwa v{self.V_SRC}, 9, v{self.E0+1} dst_sel:DWORD dst_unused:UNUSED_PAD src0_sel:DWORD src1_sel:WORD_1',
                   f'v_and_or_b32 v{self.V_EA}, v{self.E0+2}, s{self.S_EMASK}, v{self.V_EAP}',
                   f's_mov_b32 m0, s{self.S_AB}',
                   f's_mov_b64 exec, s[{self.S_AMASK}:{self.S_AMASK+1}]',
                   f'buffer_load_dwordx4 v{self.V_EA}, s[{self.S_EA}:{self.S_EA+3}], 0 offen {self.eflag} lds',
                   's_mov_b64 exec, -1'])
        for j in range(8):
            it.append([f's_add_u32 m0, s{self.S_XB}, {j*self.XROW}',
                       f'v_add_u32_dpp v{self.V_EA}, v{self.V_SRC}, v{self.V_XL} row_newbcast:{j} {DPPM}',
                       f'buffer_load_dwordx4 v{self.V_EA}, s[{self.S_X}:{self.S_X+3}], 0 offen {self.xflag} lds'])
        return it

    def build_op(self, dst, m):
        t = self.T0
        o = []
        for n in range(4):
            a, b = t + (2 * n) % 4, t + (2 * n) % 4 + 1
            o.append(f'v_mul_f32_dpp v{a}, v{m}, v{self.AU+2*n} row_newbcast:{2*n} {DPPM}')
            o.append(f'v_mul_f32_dpp v{b}, v{m}, v{self.AU+2*n+1} row_newbcast:{2*n+1} {DPPM}')
            o.append(f'v_cvt_pk_bf16_f32 v{dst+n}, v{a}, v{b}')
        return o

    def step(self, first):
        A = Asm()
        t = self.T0; e = self.E0
        bot = f's[{self.S_BOT}:{self.S_BOT+1}]'
        A(f'''
        v_lshlrev_b32 v{t}, 16, v{e}
        v_and_b32 v{t+1}, 0xffff0000, v{e}
        v_lshlrev_b32 v{t+2}, 16, v{e+1}
        s_add_u32 s{self.S_ECUR}, s{self.S_ECUR}, 192
        s_cmp_eq_u32 s{self.S_STEPS}, 1
        s_cselect_b32 s{self.S_EPTR}, s{self.S_NSLOT}, s{self.S_ECUR}
        v_cndmask_b32_e64 v{self.MA}, 1.0, v{t+2}, {bot}
        v_cndmask_b32_e64 v{self.MB}, v{t}, v{t+1}, {bot}
        v_cndmask_b32_e64 v{self.MC}, v{t+2}, 1.0, {bot}
        v_cndmask_b32_e64 v{self.ME}, v{t+1}, -v{t}, {bot}
        v_add_u32 v{self.V_EA}, s{self.S_EPTR}, v{self.V_EL}
        s_waitcnt vmcnt(0)
        ds_read_b64_tr_b16 v[{self.OC}:{self.OC+1}], v{self.V_TRA}
        ds_read_b64_tr_b16 v[{self.OC+2}:{self.OC+3}], v{self.V_TRA} offset:64
        ds_read2_b32 v[{e}:{e+1}], v{self.V_EA} offset0:0 offset1:16
        ds_read_b32 v{e+2}, v{self.V_EA} offset:128
        ''')
        rd = []
        for m in range(4):
            for tt in range(2):
                for q in range(2):
                    b = self.Breg(m, tt) + 2 * q
                    rd.append(f'ds_read_b64_tr_b16 v[{b}:{b+1}], v{self.V_TRB} offset:{q*4*self.XROW + m*128 + tt*64}')
        for r in rd[:8]: A(r)
        A('s_waitcnt lgkmcnt(10)')
        up = []
        for n in range(4):
            up.append(f'v_lshlrev_b32 v{self.AU+2*n}, 16, v{self.OC+n}')
            up.append(f'v_and_b32 v{self.AU+2*n+1}, 0xffff0000, v{self.OC+n}')
        for k in range(8): A(up[k]); A(rd[8 + k])
        for x in self.build_op(self.OA, self.MA): A(x)
        A('s_waitcnt lgkmcnt(0)')

        def mf(win, tt, op, m, zero):
            d = self.acc(win, tt); b = self.Breg(m, tt)
            c = '0' if (first and zero) else f'v[{d}:{d+15}]'
            return f'v_mfma_f32_32x32x16_bf16 v[{d}:{d+15}], v[{op}:{op+3}], v[{b}:{b+3}], {c}'
        seq = [('S0', self.OA, 0, 1), ('Ux', self.OA, 1, 1), ('Vx', self.OB, 0, 1), ('D', self.OB, 1, 1),
               ('Cx', self.OC, 2, 1), ('Uz', self.OA, 3, 0), ('Cy', self.OB, 3, 0), ('D', self.OC, 2, 0)]
        M = [mf(w, tt, op, m, z) for (w, op, m, z) in seq for tt in range(2)]
        dma = self.dma_items()
        ob = self.build_op(self.OB, self.MB)
        oc = self.build_op(self.OC, self.MC)
        oe = self.build_op(self.OC, self.ME)
        od = [f'v_xor_b32 v{self.OA+n}, v{self.V_ODM}, v{self.OA+n}' for n in range(4)]
        fill = [[] for _ in range(16)]
        fill[0] = dma[0] + dma[1] + ob[0:3]
        fill[1] = dma[2] + ob[3:6] + dma[3]
        fill[2] = dma[4] + ob[6:9] + dma[5]
        fill[3] = ob[9:12] + dma[6] + dma[7] + dma[8]
        fill[4] = oc[0:3] + od[0:2]
        fill[5] = oc[3:6] + od[2:4]
        fill[6] = oc[6:9]
        fill[7] = oc[9:12] + ['s_nop 1']
        fill[8] = ['s_nop 1']
        fill[9] = oe[0:3]
        fill[10] = oe[3:6]
        fill[11] = oe[6:9]
        fill[12] = oe[9:12]
        fill[13] = ['s_nop 0']
        A('s_nop 0')
        for k in range(16):
            A(M[k])
            for x in fill[k]: A(x)
        A(f's_sub_u32 s{self.S_STEPS}, s{self.S_STEPS}, 1\ns_cmp_lg_u32 s{self.S_STEPS}, 0')
        return A.l

    def contract(self):
        A = Asm()
        groups = [(0, ['S0']), (2, ['Vx', 'Vy', 'Vz']), (3, ['Ux', 'Uy', 'Uz']), (4, ['Cx', 'Cy', 'Cz']), (1, ['D'])]
        bufs = [self.B0, self.B0 + 16]
        def rd(g):
            p = groups[g][0]; b = bufs[g % 2]
            o = []
            for tt in range(2):
                for q in range(2):
                    r = b + tt * 8 + q * 4
                    o.append(f'ds_read_b128 v[{r}:{r+3}], v{self.V_WA} offset:{((p*2+tt)*2+q)*1024}')
            return o
        for x in rd(0) + rd(1): A(x)
        for g, (p, names) in enumerate(groups):
            A(f's_waitcnt lgkmcnt({4 if g < 4 else 0})')
            b = bufs[g % 2]
            for rho in range(8):
                for tt in range(2):
                    for nm in names:
                        a = self.acc(nm, tt); w = b + tt * 8 + rho
                        A(f'v_mul_f32 v{a}, v{a}, v{w}' if rho == 0 else f'v_fmac_f32 v{a}, v{a+rho}, v{w}')
            if g + 2 < 5:
                for x in rd(g + 2): A(x)
        t = self.T0
        A(f'v_lshl_add_u32 v{t}, v{self.V_LANE}, 2, s{self.S_CUR}\nv_lshl_add_u32 v{t+1}, v{self.V_LANE}, 1, s{self.S_CUR}')
        order = ['S0', 'Vx', 'Vy', 'Vz', 'Ux', 'Uy', 'Uz', 'Cx', 'Cy', 'Cz', 'D']
        for nm in order: A(f'v_permlane32_swap_b32 v{self.acc(nm,0)}, v{self.acc(nm,1)}')
        for nm in order: A(f'v_add_f32 v{self.acc(nm,0)}, v{self.acc(nm,0)}, v{self.acc(nm,1)}')
        r = lambda nm: f'v{self.acc(nm,0)}'
        o = self.OA
        A(f'''
        v_cvt_pk_bf16_f32 v{o+1}, {r('Vx')}, {r('Ux')}
        v_cvt_pk_bf16_f32 v{o+2}, {r('Vy')}, {r('Uy')}
        v_cvt_pk_bf16_f32 v{o+3}, -{r('Vz')}, {r('Uz')}
        v_cvt_pk_bf16_f32 v{o+4}, {r('Cx')}, -{r('Cy')}
        v_cvt_pk_bf16_f32 v{o+5}, -{r('Cz')}, -{r('Cz')}
        v_cvt_pk_bf16_f32 v{o}, {r('S0')}, {r('D')}
        ds_write_b32 v{t}, v{o+1} offset:256
        ds_write_b32 v{t}, v{o+2} offset:512
        ds_write_b32 v{t}, v{o+3} offset:768
        ds_write_b16 v{t+1}, v{o+4} offset:1024
        ds_write_b16_d16_hi v{t+1}, v{o+4} offset:1152
        ds_write_b16 v{t+1}, v{o+5} offset:1280
        ds_write_b32 v{t}, v{o}
        ''')
        for x in self.zero_uz(): A(x)
        return A.l

    def zero_uz(self):
        return [f'v_mov_b32 v{self.acc("Uz",tt)+k}, 0' for tt in range(2) for k in range(8)]

    def node_start(self):
        A = Asm()
        A(f'''
        v_readfirstlane_b32 s{self.S_TK}, v{self.V_TK}
        s_mov_b32 s{self.S_CUR}, s{self.S_NSLOT}
        s_mov_b32 s{self.S_ECUR}, s{self.S_NSLOT}
        s_mov_b32 s{self.S_STEPS}, s{self.S_NSTEPS}
        ''')
        self.setup_next(A, 'B')
        z = self.B0
        A(f'''
        v_mov_b32 v{z+4}, {self.L_TK}
        v_mov_b32 v{z+5}, 1
        s_mov_b64 exec, 1
        ds_add_rtn_u32 v{self.V_TK}, v{z+4}, v{z+5}
        s_mov_b64 exec, -1
        ''')
        return A.l

    def prologue(self):
        A = Asm(); NW, NP = self.NW, self.NP
        L = self.V_LANE
        A(f'''
        aggregate_kernel:
        s_cmp_ge_u32 s2, 256
        s_cbranch_scc1 K2_END
        s_load_dwordx2 s[4:5], s[0:1], 0
        s_load_dwordx2 s[6:7], s[0:1], 16
        s_load_dwordx2 s[90:91], s[0:1], 72
        s_load_dwordx2 s[92:93], s[0:1], 88
        v_lshrrev_b32 v1, 6, v0
        v_and_b32 v{L}, 63, v0
        s_and_b32 s{self.S_B}, s2, 7
        v_readfirstlane_b32 s{self.S_W}, v1
        s_lshl_b32 s{self.S_B}, s{self.S_B}, 5
        s_lshr_b32 s{self.S_T0}, s2, 3
        s_add_u32 s{self.S_B}, s{self.S_B}, s{self.S_T0}
        s_mul_i32 s{self.S_T0}, s{self.S_B}, {NPB}
        s_sub_u32 s{self.S_T0}, {N}, s{self.S_T0}
        s_min_u32 s{self.S_NN}, s{self.S_T0}, {NPB}
        s_waitcnt lgkmcnt(0)
        ''')
        self.st(A, 0)
        srd(A, self.S_X, 4, 5, N * 512)
        srd(A, self.S_EA, 6, 7, E * 32)
        srd(A, self.S_WS, 92, 93, WS_END)
        srd(A, self.S_OUT, 90, 91, N * 512)
        ws = f's[{self.S_WS}:{self.S_WS+3}]'
        A(f'v_lshlrev_b32 v2, 4, v{L}\ns_lshl_b32 s{self.S_T0}, s{self.S_W}, 10')
        for k in range(-(-20 // NW)):
            if (k + 1) * NW > 20:
                A(f's_cmp_ge_u32 s{self.S_W}, {20 - k*NW}\ns_cbranch_scc1 K2_WDONE')
            A(f'''
            s_add_u32 m0, s{self.S_T0}, {self.L_WT + k*NW*1024}
            s_add_u32 s{self.S_T1}, s{self.S_T0}, {WS_WT + k*NW*1024}
            buffer_load_dwordx4 v2, {ws}, s{self.S_T1} offen lds
            ''')
        A('K2_WDONE:')
        A(f'''
        s_mov_b32 s{self.S_BOT}, 0xffff0000
        s_mov_b32 s{self.S_BOT+1}, 0xffff0000
        s_and_b32 s{self.S_T0}, s{self.S_W}, 1
        s_lshl_b32 s{self.S_T1}, s{self.S_T0}, 3
        s_lshl_b32 s{self.S_AMASK}, 0x00ff00ff, s{self.S_T1}
        s_mov_b32 s{self.S_AMASK+1}, s{self.S_AMASK}
        s_mov_b32 s{self.S_EMASK}, 0x03ffffff
        s_mul_i32 s{self.S_XB}, s{self.S_W}, {self.XW}
        s_add_u32 s{self.S_XB}, s{self.S_XB}, {self.L_X}
        s_lshr_b32 s{self.S_AB}, s{self.S_W}, 1
        s_lshl_b32 s{self.S_AB}, s{self.S_AB}, 10
        s_add_u32 s{self.S_AB}, s{self.S_AB}, {self.L_A}
        s_lshl_b32 s{self.S_T0}, s{self.S_T0}, 7
        s_add_u32 s{self.S_T0}, s{self.S_T0}, s{self.S_AB}
        v_lshrrev_b32 v3, 5, v{L}
        v_bfe_u32 v4, v{L}, 4, 1
        v_bfe_u32 v5, v{L}, 2, 2
        v_and_b32 v6, 3, v{L}
        v_mul_u32_u24 v7, {self.XROW}, v5
        v_lshl_add_u32 v7, v3, 9, v7
        v_lshl_add_u32 v7, v4, 5, v7
        v_lshl_add_u32 v7, v6, 3, v7
        v_add_u32 v{self.V_TRB}, s{self.S_XB}, v7
        v_lshrrev_b32 v7, 1, v6
        v_lshl_add_u32 v7, v3, 1, v7
        v_lshlrev_b32 v7, 8, v7
        v_lshl_add_u32 v7, v5, 4, v7
        v_and_b32 v8, 1, v6
        v_lshl_add_u32 v7, v8, 3, v7
        v_add_u32 v{self.V_TRA}, s{self.S_T0}, v7
        v_and_b32 v7, 7, v{L}
        v_lshl_add_u32 v7, v3, 3, v7
        v_lshlrev_b32 v{self.V_EL}, 2, v7
        v_and_b32 v7, 31, v{L}
        v_lshlrev_b32 v{self.V_XL}, 4, v7
        v_lshlrev_b32 v{self.V_EAP}, 4, v4
        v_mul_u32_u24 v7, 0x8000, v4
        v_lshl_or_b32 v{self.V_ODM}, v7, 16, v7
        v_add_u32 v{self.V_WA}, {self.L_WT}, v2
        s_mov_b32 s{self.S_C0}, 0
        s_mov_b32 s{self.S_NC}, {NCH}
        s_mov_b32 s{self.S_P0}, 0
        s_mov_b32 s{self.S_SUB}, 0
        s_mov_b32 s{self.S_FIRST}, 1
        K2_WIN:
        ''')
        TB, AD, RM, EN, RK = 10, 20, 30, 40, 100
        A(f'''
        v_lshrrev_b32 v4, 4, v{L}
        v_lshlrev_b32 v5, 10, v4
        s_lshl_b32 s{self.S_T0}, s{self.S_W}, 12
        s_lshl_b32 s{self.S_T1}, s{self.S_B}, 2
        s_add_u32 s{self.S_T0}, s{self.S_T0}, s{self.S_T1}
        s_add_u32 s{self.S_T0}, s{self.S_T0}, {WS_TAB}
        ''')
        for p in range(NP):
            A(f'buffer_load_dword v{TB+p}, v5, {ws}, s{self.S_T0} offen')
            if p + 1 < NP: A(f's_add_u32 s{self.S_T0}, s{self.S_T0}, {NW*4096}')
        A(f'''
        s_cmp_lg_u32 s{self.S_W}, 0
        s_cbranch_scc1 K2_NOINIT
        v_lshlrev_b32 v6, 2, v{L}
        v_mov_b32 v7, 0
        v_cmp_eq_u32 vcc, {NPB}, v{L}
        v_mov_b32 v8, {2*NW}
        v_mov_b32 v9, 0xffff0000
        v_cndmask_b32 v7, v7, v8, vcc
        v_cmp_ge_u32 vcc, {NPB}, v{L}
        s_mov_b64 exec, vcc
        ds_write_b32 v6, v7 offset:{self.L_CNT}
        s_mov_b64 exec, 0xffff
        v_mov_b32 v8, 0x03ffffe0
        ds_write_b32 v6, v9 offset:{self.L_PAD+64}
        ds_write_b32 v6, v8 offset:{self.L_PAD+128}
        s_mov_b64 exec, -1
        K2_NOINIT:
        s_lshl_b32 s{self.S_T0}, s{self.S_C0}, 10
        s_add_u32 s{self.S_T0}, s{self.S_T0}, s{self.S_T1}
        s_add_u32 s{self.S_T0}, s{self.S_T0}, {WS_TAB}
        s_buffer_load_dword s{self.S_T2}, {ws}, s{self.S_T0}
        s_lshl_b32 s{self.S_T1}, s{self.S_W}, 2
        v_add_u32 v4, s{self.S_T1}, v4
        v_and_b32 v6, 15, v{L}
        s_waitcnt lgkmcnt(0)
        s_barrier
        s_lshr_b32 s{self.S_T2}, s{self.S_T2}, 16
        s_add_u32 s{self.S_T3}, s{self.S_P0}, {CAP}
        s_add_u32 s{self.S_NC0}, s{self.S_C0}, s{self.S_NC}
        s_mov_b32 s{self.S_NP0}, 0
        s_mov_b32 s{self.S_NSUB}, 0
        s_cmp_eq_u32 s{self.S_SUB}, 0
        s_cbranch_scc1 K2_NOSUB
        s_cmp_ge_u32 s{self.S_T3}, s{self.S_T2}
        s_cbranch_scc1 K2_SUBSET
        s_mov_b32 s{self.S_NC0}, s{self.S_C0}
        s_mov_b32 s{self.S_NP0}, s{self.S_T3}
        s_mov_b32 s{self.S_NSUB}, 1
        s_branch K2_SUBSET
        K2_NOSUB:
        s_mov_b32 s{self.S_T3}, 0xffff
        K2_SUBSET:
        s_cmp_ge_u32 s{self.S_NC0}, {NCH}
        s_cselect_b32 s{self.S_LAST}, 1, 0
        v_mov_b32 v9, 0
        ''')
        self.st(A, 1)
        for p in range(NP):
            A(f's_waitcnt vmcnt({NP-1-p})')
            A(f'''
            v_lshrrev_b32 v7, 16, v{TB+p}
            v_subrev_u32 v8, s{self.S_C0}, v4
            v_min_u32 v7, s{self.S_T3}, v7
            v_cmp_gt_u32 vcc, s{self.S_NC}, v8
            v_subrev_u32 v7, s{self.S_P0}, v7
            v_and_b32 v8, 0xffff, v{TB+p}
            v_cndmask_b32 v7, 0, v7, vcc
            v_add3_u32 v8, v8, v6, s{self.S_P0}
            v_sub_u32 v{RM+p}, v7, v6
            v_mul_u32_u24 v8, 12, v8
            v_mul_u32_u24 v7, {CH*12}, v4
            v_cmp_lt_i32 s[{self.S_M+4*p}:{self.S_M+4*p+1}], 0, v{RM+p}
            v_cmp_lt_i32 s[{self.S_M+4*p+2}:{self.S_M+4*p+3}], 16, v{RM+p}
            v_add_u32 v{AD+p}, v7, v8
            v_max_i32 v9, v9, v{RM+p}
            v_add_u32 v4, {4*NW}, v4
            ''')
        A(f's_mov_b32 s{self.S_T0}, {WS_ENT}')
        for sub in range(2):
            for p in range(NP):
                m = self.S_M + 4 * p + 2 * sub
                r = EN + 4 * (sub * NP + p)
                A(f's_mov_b64 exec, s[{m}:{m+1}]\nbuffer_load_dwordx3 v[{r}:{r+2}], v{AD+p}, {ws}, s{self.S_T0} offen offset:{192*sub}')
        A('s_mov_b64 exec, -1\nv_mov_b32 v2, 1')
        self.st(A, 2)
        RK = EN + 4 * 2 * NP
        G = 2 * NP
        for g in range(G):
            sub, p = divmod(g, NP); m = self.S_M + 4 * p + 2 * sub; r = EN + 4 * g
            A(f'''
            s_waitcnt vmcnt({G-1-g})
            s_mov_b64 exec, s[{m}:{m+1}]
            v_lshrrev_b32 v{r+3}, 26, v{r+2}
            v_lshlrev_b32 v3, 2, v{r+3}
            ds_add_rtn_u32 v{RK+g}, v3, v2 offset:{self.L_CNT}
            ''')
        def place(rk, r):
            return f'''
            v_min_u32 v{rk}, {CAP-1}, v{rk}
            v_mul_u32_u24 v{r+3}, {SLOT}, v{r+3}
            v_lshrrev_b32 v3, 4, v{rk}
            v_lshl_add_u32 v{r+3}, v{rk}, 2, v{r+3}
            v_lshl_add_u32 v{r+3}, v3, 7, v{r+3}
            ds_write2_b32 v{r+3}, v{r}, v{r+1} offset0:{self.L_SL//4} offset1:{self.L_SL//4+16}
            ds_write_b32 v{r+3}, v{r+2} offset:{self.L_SL+128}
            '''
        A('s_waitcnt lgkmcnt(0)')
        for g in range(G):
            sub, p = divmod(g, NP); m = self.S_M + 4 * p + 2 * sub
            A(f's_mov_b64 exec, s[{m}:{m+1}]')
            A(place(RK + g, EN + 4 * g))
        self.st(A, 3)
        A(f'''
        s_mov_b64 exec, -1
        s_mov_b32 s{self.S_T1}, 32
        s_add_u32 s{self.S_T0}, s{self.S_T0}, 384
        K2_XLOOP:
        v_cmp_lt_i32 vcc, s{self.S_T1}, v9
        s_cbranch_vccz K2_XDONE
        ''')
        for p in range(NP):
            A(f'''
            v_cmp_lt_i32 vcc, s{self.S_T1}, v{RM+p}
            s_and_saveexec_b64 s[{self.S_M}:{self.S_M+1}], vcc
            s_cbranch_execz K2_XS{p}
            buffer_load_dwordx3 v[{EN}:{EN+2}], v{AD+p}, {ws}, s{self.S_T0} offen
            s_waitcnt vmcnt(0)
            v_lshrrev_b32 v{EN+3}, 26, v{EN+2}
            v_lshlrev_b32 v3, 2, v{EN+3}
            ds_add_rtn_u32 v{RK}, v3, v2 offset:{self.L_CNT}
            s_waitcnt lgkmcnt(0)
            ''')
            A(place(RK, EN))
            A(f'K2_XS{p}:\ns_mov_b64 exec, -1')
        A(f'''
        s_add_u32 s{self.S_T1}, s{self.S_T1}, 16
        s_add_u32 s{self.S_T0}, s{self.S_T0}, 192
        s_branch K2_XLOOP
        K2_XDONE:
        v_lshlrev_b32 v3, 2, v{L}
        v_cmp_gt_u32 vcc, {NPB}, v{L}
        v_mov_b32 v{self.V_CNT}, 0
        s_waitcnt vmcnt(0) lgkmcnt(0)
        s_barrier
        s_mov_b64 exec, vcc
        ds_read_b32 v{self.V_CNT}, v3 offset:{self.L_CNT}
        s_mov_b64 exec, -1
        s_waitcnt lgkmcnt(0)
        v_cmp_lt_u32 vcc, {CAP}, v{self.V_CNT}
        s_cbranch_vccz K2_FITS
        s_barrier
        s_cmp_gt_u32 s{self.S_NC}, 1
        s_cselect_b32 s{self.S_SUB}, 0, 1
        s_add_u32 s{self.S_NC}, s{self.S_NC}, 1
        s_lshr_b32 s{self.S_NC}, s{self.S_NC}, 1
        s_branch K2_WIN
        K2_FITS:
        s_mov_b32 s{self.S_TK}, s{self.S_W}
        ''')
        self.st(A, 4)
        self.setup_next(A, 'A')
        A(f'''
        s_cmp_eq_u32 s{self.S_NSTEPS}, 0
        s_cbranch_scc1 K2_DONE
        v_add_u32 v{self.V_EA}, s{self.S_NSLOT}, v{self.V_EL}
        s_add_u32 s{self.S_T0}, s{self.S_W}, {NW}
        ds_read2_b32 v[{self.E0}:{self.E0+1}], v{self.V_EA} offset0:0 offset1:16
        ds_read_b32 v{self.E0+2}, v{self.V_EA} offset:128
        v_mov_b32 v{self.V_TK}, s{self.S_T0}
        s_waitcnt lgkmcnt(0)
        ''')
        for g in self.dma_items():
            for x in g: A(x)
        for x in self.zero_uz(): A(x)
        return A.l

    def epilogue(self):
        A = Asm(); L = self.V_LANE
        ws = f's[{self.S_WS}:{self.S_WS+3}]'
        FR, AC, BB = 0, 80, 144
        A('K2_DONE:')
        self.st(A, 5)
        A(f'''
        v_lshlrev_b32 v{self.T0}, 4, v{L}
        s_cmp_ge_u32 s{self.S_W}, 4
        s_cbranch_scc1 K2_NOFR
        s_lshr_b32 s{self.S_T0}, s{self.S_W}, 1
        s_mul_i32 s{self.S_T0}, s{self.S_T0}, 20480
        s_add_u32 s{self.S_T0}, s{self.S_T0}, {WS_FRAG}
        s_waitcnt vmcnt(0)
        ''')
        for ks in range(20):
            if ks and ks % 4 == 0: A(f's_add_u32 s{self.S_T0}, s{self.S_T0}, 4096')
            A(f'buffer_load_dwordx4 v[{FR+4*ks}:{FR+4*ks+3}], v{self.T0}, {ws}, s{self.S_T0} offen offset:{(ks%4)*1024}')
        A(f'''
        K2_NOFR:
        s_waitcnt lgkmcnt(0)
        s_barrier
        ''')
        self.st(A, 6)
        if self.dump:
            A(f'''
            s_mul_i32 s{self.S_T1}, s{self.S_B}, 0x12000
            s_add_u32 s{self.S_T1}, s{self.S_T1}, {1<<25}
            s_mov_b32 s{self.S_WS+2}, {1<<27}
            s_lshl_b32 s{self.S_T2}, s{self.S_W}, 10
            v_add_u32 v200, s{self.S_T2}, v{self.T0}
            ''')
            for k in range(9):
                A(f'''
                ds_read_b128 v[204:207], v200 offset:{self.L_SL}
                s_waitcnt lgkmcnt(0)
                buffer_store_dwordx4 v[204:207], v200, {ws}, s{self.S_T1} offen
                s_waitcnt vmcnt(0)
                v_add_u32 v200, {self.NW*1024}, v200
                ''')
            A(f's_mov_b32 s{self.S_WS+2}, {WS_END}')
        A(f'''
        s_cmp_ge_u32 s{self.S_W}, 4
        s_cbranch_scc1 K2_NEXTWIN
        s_and_b32 s{self.S_T0}, s{self.S_W}, 1
        s_lshl_b32 s{self.S_T0}, s{self.S_T0}, 5
        v_and_b32 v{self.T0+1}, 31, v{L}
        v_add_u32 v{self.T0+1}, s{self.S_T0}, v{self.T0+1}
        v_lshrrev_b32 v{self.T0+2}, 5, v{L}
        v_mul_u32_u24 v{self.T0+3}, {SLOT}, v{self.T0+1}
        v_lshl_add_u32 v{self.T0+3}, v{self.T0+2}, 4, v{self.T0+3}
        ''')
        jobs = [(0, ks, ks * 32) for ks in range(8)]
        for j in range(3):
            jobs += [(1 + j, 8 + ks, 256 + 256 * j + ks * 32) for ks in range(8)]
            jobs += [(1 + j, 16 + ks, 1024 + 128 * j + ks * 32) for ks in range(4)]
        NB = 8
        def rd(i): return f'ds_read_b128 v[{BB+4*(i%NB)}:{BB+4*(i%NB)+3}], v{self.T0+3} offset:{self.L_SL+jobs[i][2]}'
        for i in range(NB - 1): A(rd(i))
        A('s_waitcnt vmcnt(0)')
        seen = set()
        for i, (part, ks, off) in enumerate(jobs):
            if i + NB - 1 < len(jobs): A(rd(i + NB - 1)); out = NB - 1
            else: out = len(jobs) - 1 - i
            A(f's_waitcnt lgkmcnt({out})')
            d = AC + 16 * part; b = BB + 4 * (i % NB)
            c = f'v[{d}:{d+15}]' if part in seen else '0'
            seen.add(part)
            A(f'v_mfma_f32_32x32x16_bf16 v[{d}:{d+15}], v[{FR+4*ks}:{FR+4*ks+3}], v[{b}:{b+3}], {c}')
        A(f'''
        s_lshl_b32 s{self.S_T0}, s{self.S_B}, 2
        s_add_u32 s{self.S_T0}, s{self.S_T0}, s{self.S_W}
        s_lshl_b32 s{self.S_T0}, s{self.S_T0}, 14
        s_nop 7
        s_cmp_lg_u32 s{self.S_FIRST}, 0
        s_cbranch_scc1 K2_NOLOADP
        s_mov_b32 s{self.S_T1}, s{self.S_T0}
        ''')
        for k in range(16):
            if k and k % 4 == 0: A(f's_add_u32 s{self.S_T1}, s{self.S_T1}, 4096')
            A(f'buffer_load_dwordx4 v[{4*k}:{4*k+3}], v{self.T0}, {ws}, s{self.S_T1} offen offset:{(k%4)*1024} sc1')
        A('s_waitcnt vmcnt(0)')
        for k in range(64): A(f'v_add_f32 v{AC+k}, v{AC+k}, v{k}')
        A(f'''
        K2_NOLOADP:
        s_cmp_lg_u32 s{self.S_LAST}, 0
        s_cbranch_scc1 K2_FINAL
        ''')
        for k in range(16):
            if k and k % 4 == 0: A(f's_add_u32 s{self.S_T0}, s{self.S_T0}, 4096')
            A(f'buffer_store_dwordx4 v[{AC+4*k}:{AC+4*k+3}], v{self.T0}, {ws}, s{self.S_T0} offen offset:{(k%4)*1024} sc1')
        A(f'''
        s_waitcnt vmcnt(0)
        s_branch K2_NEXTWIN
        K2_FINAL:
        s_mul_i32 s{self.S_T0}, s{self.S_B}, {NPB*512}
        s_lshr_b32 s{self.S_T1}, s{self.S_W}, 1
        s_lshl_b32 s{self.S_T1}, s{self.S_T1}, 6
        s_add_u32 s{self.S_T0}, s{self.S_T0}, s{self.S_T1}
        v_lshlrev_b32 v{self.T0+3}, 9, v{self.T0+1}
        v_lshl_add_u32 v{self.T0+3}, v{self.T0+2}, 5, v{self.T0+3}
        v_cmp_gt_u32 vcc, s{self.S_NN}, v{self.T0+1}
        ''')
        for k in range(16): A(f'v_mul_f32 v{k}, 0xbfb8aa3b, v{AC+k}')
        for k in range(16): A(f'v_exp_f32 v{k}, v{k}')
        for k in range(16): A(f'v_add_f32 v{k}, 1.0, v{k}')
        for k in range(16): A(f'v_rcp_f32 v{k}, v{k}')
        for k in range(8): A(f'v_cvt_pk_bf16_f32 v{16+k}, v{AC+2*k}, v{AC+2*k+1}')
        for j in range(3):
            for k in range(16): A(f'v_mul_f32 v{AC+16+16*j+k}, v{AC+16+16*j+k}, v{k}')
            for k in range(8): A(f'v_cvt_pk_bf16_f32 v{24+8*j+k}, v{AC+16+16*j+2*k}, v{AC+16+16*j+2*k+1}')
        A('s_mov_b64 exec, vcc')
        for part in range(4):
            for hf in range(2):
                r = 16 + 8 * part + 4 * hf
                A(f'buffer_store_dwordx4 v[{r}:{r+3}], v{self.T0+3}, s[{self.S_OUT}:{self.S_OUT+3}], s{self.S_T0} offen offset:{128*part+16*hf}')
        A('s_mov_b64 exec, -1\nK2_NEXTWIN:')
        if self.stamp:
            A('s_waitcnt vmcnt(0)')
            self.st(A, 7)
            if self.stamp == 2:
                A(f'''
                s_cmp_lg_u32 s{self.S_W}, 0
                s_cbranch_scc1 K2_STX
                s_load_dwordx2 s[96:97], s[0:1], 80
                s_waitcnt lgkmcnt(0)
                s_and_b32 s97, s97, 0xffff
                s_mov_b32 s98, 256
                s_mov_b32 s99, 0x20000
                s_mov_b32 s{self.S_WS+2}, {1<<27}
                v_lshlrev_b32 v254, 2, v{L}
                s_cmp_eq_u32 s2, 200
                s_cbranch_scc0 K2_STY
                s_mov_b64 exec, 0xf1
                buffer_store_dword v255, v254, s[96:99], 0 offen offset:32
                s_mov_b64 exec, -1
                K2_STY:
                s_cmp_eq_u32 s2, 0
                s_cbranch_scc0 K2_STX
                s_mov_b32 s{self.S_T0}, {(1<<26)+(1<<20)}
                v_mov_b32 v253, 0
                buffer_load_dwordx2 v[2:3], v253, {ws}, s{self.S_T0} offen sc1
                buffer_load_dwordx2 v[4:5], v253, {ws}, s{self.S_T0} offen offset:1992 sc1
                s_waitcnt vmcnt(0)
                s_mov_b64 exec, 1
                buffer_store_dwordx4 v[2:5], v253, s[96:99], 0 offen
                s_mov_b64 exec, 0xf0
                buffer_store_dword v255, v254, s[96:99], 0 offen
                s_mov_b64 exec, 1
                buffer_store_dword v255, v254, s[96:99], 0 offen offset:36
                s_mov_b64 exec, -1
                K2_STX:
                ''')
            A(f'''
            s_mov_b32 s{self.S_WS+2}, {1<<27}
            s_lshl_b32 s{self.S_T0}, s2, 3
            s_add_u32 s{self.S_T0}, s{self.S_T0}, s{self.S_W}
            s_lshl_b32 s{self.S_T0}, s{self.S_T0}, 5
            s_add_u32 s{self.S_T0}, s{self.S_T0}, {1<<26}
            v_lshlrev_b32 v254, 2, v{L}
            s_mov_b64 exec, 0xff
            buffer_store_dword v255, v254, {ws}, s{self.S_T0} offen
            s_mov_b64 exec, -1
            s_mov_b32 s{self.S_WS+2}, {WS_END}
            ''')
        A(f'''
        s_cmp_lg_u32 s{self.S_LAST}, 0
        s_cbranch_scc1 K2_END
        s_mov_b32 s{self.S_C0}, s{self.S_NC0}
        s_mov_b32 s{self.S_P0}, s{self.S_NP0}
        s_mov_b32 s{self.S_SUB}, s{self.S_NSUB}
        s_mov_b32 s{self.S_FIRST}, 0
        s_waitcnt vmcnt(0) lgkmcnt(0)
        s_barrier
        s_branch K2_WIN
        K2_END:
        s_endpgm
        ''')
        return A.l

    def gen(self):
        pro, ns, s1, s2, con, epi = self.prologue(), self.node_start(), self.step(True), self.step(False), self.contract(), self.epilogue()
        A = Asm()
        A.ext(pro); A('K2_NODE:'); A.ext(ns); A.ext(s1)
        A('s_cbranch_scc0 K2_CON\nK2_REST:'); A.ext(s2); A('s_cbranch_scc1 K2_REST\nK2_CON:'); A.ext(con)
        A(f's_cmp_lg_u32 s{self.S_NSTEPS}, 0\ns_cbranch_scc1 K2_NODE')
        A.ext(epi)
        br = ['s_nop 0']
        bad = check(pro + ns + s1 + br + s2 + br + s2 + br + con + br + ns + s1 + br + con + br + epi, 'k2')
        return A.l, bad


def build(NW=8, eflag='nt', xflag='', dump=0, stamp=0, probe=''):
    k1 = gen_k1(stamp == 2)
    bad = check(k1, 'k1')
    k2o = K2(NW, eflag, xflag, dump, stamp)
    k2, b2 = k2o.gen()
    assert bad + b2 == 0, 'hazards'
    hdr = f'''; Equiformer tensor-product message passing, two launches.
; @launch kernel=sort_edges_kernel grid=(256,1,1) block=(832,1,1) lds={K1_LDS}
; @launch kernel=aggregate_kernel grid=(256,1,1) block=({NW*64},1,1) lds={k2o.LDS}
.amdgcn_target "amdgcn-amd-amdhsa--gfx950"
.text
'''
    s = hdr
    extra = ''
    if probe:
        pre = {'empty': '; @launch kernel=probe_kernel grid=(256,1,1) block=(64,1,1) lds=0\n',
               'empty2': '; @launch kernel=probe_kernel grid=(256,1,1) block=(64,1,1) lds=0\n' * 4,
               'ea': '; @launch kernel=probe_kernel grid=(250,1,1) block=(1024,1,1) lds=0\n',
               'ea2': '; @launch kernel=probe_kernel grid=(250,1,1) block=(1024,1,1) lds=0\n' * 2}[probe]
        s = s.replace('; @launch kernel=sort', pre + '; @launch kernel=sort')
        A = Asm()
        A('probe_kernel:')
        if probe.startswith('ea'):
            A('s_cmp_ge_u32 s2, 250\ns_cbranch_scc1 P_END\ns_load_dwordx2 s[4:5], s[0:1], 16\nv_lshlrev_b32 v1, 4, v0\ns_waitcnt lgkmcnt(0)')
            srd(A, 8, 4, 5, E * 32)
            A('s_mul_i32 s3, s2, 102400')
            for k in range(7): A(f'buffer_load_dwordx4 v[{4+4*k}:{7+4*k}], v1, s[8:11], s3 offen\ns_add_u32 s3, s3, 16384')
            A('s_waitcnt vmcnt(0)')
        A('P_END:\ns_endpgm')
        s += '.globl probe_kernel\n.p2align 8\n.type probe_kernel,@function\n' + '\n'.join(A.l) + '\n'
        extra = desc('probe_kernel', 40, 32)
    for name, body in (('sort_edges_kernel', k1), ('aggregate_kernel', k2)):
        s += f'.globl {name}\n.p2align 8\n.type {name},@function\n' + '\n'.join(body) + '\n'
    s += desc('sort_edges_kernel', 48, 102 if stamp == 2 else 64) + desc('aggregate_kernel', 256, 102) + extra
    return s


if __name__ == '__main__':
    out = sys.argv[1] if len(sys.argv) > 1 else 'gather_scatter__tensor_product_equiv_equiformer__graph.s'
    kw = dict(a.split('=') for a in sys.argv[2:])
    for k in kw:
        if kw[k].isdigit(): kw[k] = int(kw[k])
    open(out, 'w').write(build(**kw))
    print('wrote', out)
```

```python
import sys
sys.path.insert(0,'gen')
import gen as G
def mk(out, which):
    s=G.build(stamp=2)
    B=G.Asm()
    B(f'''
    amp_kernel:
    s_cmp_ge_u32 s2, 1
    s_cbranch_scc1 Q_END
    s_load_dwordx2 s[6:7], s[0:1], 88
    s_load_dwordx2 s[16:17], s[0:1], 80
    s_memrealtime s[20:21]
    s_waitcnt lgkmcnt(0)
    ''')
    G.srd(B,12,6,7,1<<27)
    B(f'''
    s_and_b32 s17, s17, 0xffff
    s_mov_b32 s18, 256
    s_mov_b32 s19, 0x20000
    s_mov_b32 s3, {(1<<26)+(1<<20)}
    s_buffer_load_dwordx2 s[4:5], s[12:15], s3
    s_mov_b32 s3, {(1<<26)}
    s_buffer_load_dwordx8 s[24:31], s[12:15], s3
    s_waitcnt lgkmcnt(0)
    ''')
    a,b={'k1':(4,5),'k1k2':(4,24),'k2':(24,31),'all':(4,20),'pro':(24,28),'tail':(31,20)}[which]
    B(f'''
    s_sub_u32 s4, s{b}, s{a}
    v_mov_b32 v2, s4
    v_mov_b32 v3, 0
    buffer_store_dword v2, v3, s[16:19], 0 offen
    s_min_u32 s4, s4, 9000
    s_mul_i32 s4, s4, 10
    Q_LOOP:
    s_memrealtime s[22:23]
    s_waitcnt lgkmcnt(0)
    s_sub_u32 s22, s22, s20
    s_cmp_lt_u32 s22, s4
    s_cbranch_scc1 Q_LOOP
    Q_END:
    s_endpgm
    ''')
    al='; @launch kernel=amp_kernel grid=(1,1,1) block=(64,1,1) lds=0\n'
    s=s.replace('.amdgcn_target',al+'.amdgcn_target')
    code=f'.globl amp_kernel\n.p2align 8\n.type amp_kernel,@function\n'+'\n'.join(B.l)+'\n'
    s=s.replace('.section .rodata',code+'.section .rodata',1)
    s+=G.desc('amp_kernel',8,40)
    open(out,'w').write(s)
for w in ('k1','k1k2','k2','all','pro','tail'): mk(f'q_{w}.s',w)
```
